```python
import torch

def _softmax(x, axis=-1):
    return torch.softmax(x, dim=axis)
def _gelu(x):
    return torch.nn.functional.gelu(x, approximate="tanh")
def _silu(x):
    return torch.nn.functional.silu(x)
def _sigmoid(x):
    return torch.sigmoid(x)
def _layernorm(x, axis=-1, eps=1e-5):
    m = x.mean(dim=axis, keepdim=True)
    v = x.var(dim=axis, keepdim=True, unbiased=False)
    return (x - m) / torch.sqrt(v + eps)
def _scatter_add(tgt, idx, src, axis=0):
    return tgt.clone().index_add_(axis, idx, src)
def _segment_sum(src, seg, n):
    out = torch.zeros((n,) + src.shape[1:], dtype=src.dtype)
    return out.index_add_(0, seg, src)
def _pad(x, pw):
    flat = tuple(v for pair in reversed(pw) for v in pair)
    return torch.nn.functional.pad(x, flat)

kernel_name = 'standalone__batchnorm__sampling'

def setup_inputs():

    _w = (lambda a: (lambda t: t.to(torch.bfloat16) if t.is_floating_point() else t)(torch.as_tensor(a)))
    B, S, C = 1024, 8, 1024
    K = 3
    return {
        "x": _w((lambda *s: torch.randn(*s, dtype=torch.bfloat16) * 0.05)(B, S, C)),
        "w": _w((lambda *s: torch.randn(*s, dtype=torch.bfloat16) * 0.05)(K, C, C) * (1.0 / (K * C) ** 0.5)),
        "mean": _w((lambda *s: torch.randn(*s, dtype=torch.bfloat16) * 0.05)(C) * 0.1),
        "var": _w(torch.abs((lambda *s: torch.randn(*s, dtype=torch.bfloat16) * 0.05)(C)) + 0.5),
        "g": _w((lambda *s: torch.randn(*s, dtype=torch.bfloat16) * 0.05)(C) + 1.0),
        "b": _w((lambda *s: torch.randn(*s, dtype=torch.bfloat16) * 0.05)(C) * 0.1),
    }

def reference(x, w, mean, var, g, b):
    K = 3
    P = K // 2
    S = x.shape[1]
    xp = _pad(x, ((0, 0), (P, P), (0, 0)))
    y = sum(torch.einsum('bsc,cd->bsd', xp[:, k:k + S, :], w[k]) for k in range(K))
    inv_std = 1.0 / torch.sqrt(var + 1e-5)
    y = (y - mean) * (g * inv_std) + b
    return _silu(y)
```

```python
import sys

HEADER = open("standalone__batchnorm__sampling.s.ref").read().split("; Override launch")[0]
KNAME = "standalone__batchnorm__sampling_kernel"

class Asm:
    def __init__(self):
        self.l = []
    def __call__(self, s):
        self.l.append("    " + s)
    def label(self, s):
        self.l.append(s + ":")
    def text(self):
        return "\n".join(self.l) + "\n"

def gen(stamps=False, prio_c=0, prio_l=0, noepi=False, xpol="", wpol="", nomfma=False):
    a = Asm()
    SLOT = 40960
    NST = 32
    ACC = 128
    XA, XB = 0, 32
    WA, WB = 64, 76
    SC, SH = 88, 104
    VX0, VX1, VW = 120, 121, 122
    BX0, BX1, BW = 123, 124, 125
    VOUT = 126
    VT = 127

    def stamp(j):
        if not stamps: return
        a(f"s_memtime s[40:41]")
        a(f"s_memrealtime s[42:43]")
        a(f"s_waitcnt lgkmcnt(0)")
        a(f"s_mov_b32 s{60+4*j}, s40"); a(f"s_mov_b32 s{61+4*j}, s41")
        a(f"s_mov_b32 s{62+4*j}, s42"); a(f"s_mov_b32 s{63+4*j}, s43")

    a.label(KNAME)
    a("s_cmp_ge_u32 s2, 256")
    a("s_cbranch_scc1 L_end")
    stamp(0)
    a("s_load_dwordx4 s[20:23], s[0:1], 0")
    a("s_load_dwordx8 s[24:31], s[0:1], 16")
    a("s_load_dwordx2 s[32:33], s[0:1], 48")
    if stamps: a("s_load_dwordx2 s[34:35], s[0:1], 64")
    a("v_lshrrev_b32 v1, 6, v0")
    a("s_and_b32 s19, s2, 7")
    a("v_readfirstlane_b32 s18, v1")
    a("s_lshr_b32 s3, s2, 3")
    a("s_lshr_b32 s16, s19, 1")
    a("s_lshl_b32 s16, s16, 3")
    a("s_and_b32 s36, s3, 7")
    a("s_add_u32 s16, s16, s36")
    a("s_and_b32 s17, s19, 1")
    a("s_lshl_b32 s17, s17, 2")
    a("s_lshr_b32 s36, s3, 3")
    a("s_add_u32 s17, s17, s36")
    a("v_and_b32 v0, 63, v0")
    a("s_lshl_b32 s36, s16, 19")
    a("s_waitcnt lgkmcnt(0)")
    a("s_add_u32 s4, s20, s36"); a("s_addc_u32 s5, s21, 0"); a("s_mov_b32 s6, 524288"); a("s_mov_b32 s7, 0x20000")
    a("s_mov_b32 s8, s22"); a("s_mov_b32 s9, s23"); a("s_mov_b32 s10, 6291456"); a("s_mov_b32 s11, 0x20000")
    a("s_add_u32 s12, s32, s36"); a("s_addc_u32 s13, s33, 0"); a("s_mov_b32 s14, 524288"); a("s_mov_b32 s15, 0x20000")
    a("s_cmp_ge_u32 s18, 4")
    a("s_cbranch_scc0 L_compute")

    if prio_l: a(f"s_setprio {prio_l}")
    a("s_sub_u32 s18, s18, 4")
    a("v_lshrrev_b32 v1, 2, v0")
    a("v_lshlrev_b32 v1, 14, v1")
    a("v_lshrrev_b32 v2, 4, v0")
    a("v_xor_b32 v3, v0, v2")
    a("v_and_b32 v3, 3, v3")
    a("v_lshlrev_b32 v3, 4, v3")
    a("s_lshl_b32 s36, s18, 12")
    a("v_add3_u32 v1, v1, v3, s36")
    a("v_lshlrev_b32 v3, 2, v2")
    a("v_and_b32 v4, 15, v0")
    a("v_xor_b32 v3, v3, v4")
    a("v_lshlrev_b32 v3, 4, v3")
    a("v_lshlrev_b32 v2, 11, v2")
    a("s_lshl_b32 s36, s18, 14")
    a("s_lshl_b32 s37, s17, 8")
    a("s_add_u32 s36, s36, s37")
    a("v_add3_u32 v2, v2, v3, s36")
    a("s_mov_b32 s44, 0"); a("s_mov_b32 s45, 0")
    a("s_lshl_b32 s48, s18, 12")
    a("s_lshl_b32 s49, s18, 11")
    a("s_add_u32 s49, s49, 16384")
    a("s_mov_b32 s50, 0")

    def issue():
        a("s_add_u32 s46, s50, s48")
        a("s_add_u32 s47, s50, s49")
        a("s_add_u32 s51, s44, 262144")
        seq = []
        for tap in (1, 0, 2):
            for j in range(2):
                seq.append(("w", tap, j))
        xs = [("x", 0, 0), ("x", 0, 1), ("x", 1, 0), ("x", 1, 1)]
        order = [seq[0], seq[1], xs[0], xs[2], seq[2], seq[3], xs[1], xs[3], seq[4], seq[5]]
        for o in order:
            if o[0] == "x":
                _, bh, sidx = o
                a(f"s_add_u32 m0, s46, {bh*1024}")
                off = " offset:2048" if sidx else ""
                a("s_nop 0")
                a(f"buffer_load_dwordx4 v1, s[4:7], {'s51' if bh else 's44'} offen{off}{xpol} lds")
            else:
                _, tap, j = o
                a(f"s_add_u32 m0, s47, {tap*8192 + j*1024}")
                a(f"s_add_u32 s52, s45, {tap*2097152 + j*8192}")
                a(f"buffer_load_dwordx4 v2, s[8:11], s52 offen{wpol} lds")
        a("s_add_u32 s44, s44, 64")
        a("s_add_u32 s45, s45, 65536")
        a(f"s_add_u32 s50, s50, {SLOT}")
        a(f"s_cmp_eq_u32 s50, {4*SLOT}")
        a("s_cselect_b32 s50, 0, s50")

    issue(); issue(); issue()
    a("s_mov_b32 s53, 0")
    a.label("L_ld_loop")
    a("s_waitcnt vmcnt(20)")
    a("s_barrier")
    issue()
    a("s_add_u32 s53, s53, 1")
    a(f"s_cmp_lt_u32 s53, {NST-3}")
    a("s_cbranch_scc1 L_ld_loop")
    a("s_waitcnt vmcnt(20)"); a("s_barrier")
    a("s_waitcnt vmcnt(10)"); a("s_barrier")
    a("s_waitcnt vmcnt(0)"); a("s_barrier")
    a("s_endpgm")

    a.label("L_compute")
    if prio_c: a(f"s_setprio {prio_c}")
    a("v_lshrrev_b32 v1, 5, v0")
    a("s_lshl_b32 s36, s17, 8")
    a("s_lshl_b32 s37, s18, 6")
    a("s_add_u32 s36, s36, s37")
    a("v_lshlrev_b32 v2, 4, v1")
    a("v_add_u32 v2, s36, v2")
    for k in range(4):
        a(f"global_load_dwordx4 v[{8+8*k}:{11+8*k}], v2, s[{24+2*k}:{25+2*k}]")
        a(f"global_load_dwordx4 v[{12+8*k}:{15+8*k}], v2, s[{24+2*k}:{25+2*k}] offset:32")
    a("v_and_b32 v3, 31, v0")
    a(f"v_lshl_add_u32 v{VOUT}, v3, 14, v2")
    a("v_lshrrev_b32 v4, 2, v3")
    a("v_and_b32 v4, 3, v4")
    a("v_xor_b32 v4, v4, v1")
    a("v_lshlrev_b32 v4, 4, v4")
    a(f"v_lshl_add_u32 v{BX0}, v3, 6, v4")
    a(f"v_xor_b32 v{BX1}, 32, v{BX0}")
    a("v_bfe_u32 v4, v0, 2, 2")
    a("v_lshl_add_u32 v5, v1, 3, v4")
    a("v_lshlrev_b32 v5, 8, v5")
    a("v_xor_b32 v4, s18, v4")
    a("v_lshl_add_u32 v5, v4, 6, v5")
    a("v_bfe_u32 v4, v0, 4, 1")
    a("v_lshl_add_u32 v5, v4, 5, v5")
    a("v_and_b32 v4, 1, v0")
    a("v_lshl_add_u32 v5, v4, 4, v5")
    a("v_bfe_u32 v4, v0, 1, 1")
    a("v_lshl_add_u32 v5, v4, 3, v5")
    a(f"v_add_u32 v{BW}, 16384, v5")
    for r in range(128):
        a(f"v_mov_b32 v{ACC+r}, 0")
    a("s_waitcnt vmcnt(0)")
    a("s_mov_b32 s36, 0xffff0000")
    a("s_mov_b32 s37, 0x3727c5ac")
    for r in range(16):
        dw, hi = r >> 1, r & 1
        def unpack(dst, base):
            if hi: a(f"v_and_b32 v{dst}, s36, v{base+dw}")
            else: a(f"v_lshlrev_b32 v{dst}, 16, v{base+dw}")
        def rnd(x):
            a(f"v_cvt_pk_bf16_f32 v{x}, v{x}, v{x}")
            a(f"v_and_b32 v{x}, s36, v{x}")
        unpack(40, 16); unpack(41, 24); unpack(42, 8); unpack(43, 32)
        a("v_add_f32 v40, s37, v40"); rnd(40)
        a("v_sqrt_f32 v40, v40"); a("s_nop 0"); rnd(40)
        a("v_rcp_f32 v40, v40"); a("s_nop 0"); rnd(40)
        a(f"v_mul_f32 v{SC+r}, v41, v40"); rnd(SC + r)
        a(f"v_fma_f32 v{SH+r}, -v42, v{SC+r}, v43")
    a(f"v_mov_b32 v{VX0}, v{BX0}"); a(f"v_mov_b32 v{VX1}, v{BX1}"); a(f"v_mov_b32 v{VW}, v{BW}")
    a("s_mov_b32 s50, 0")
    a("s_mov_b32 s53, 0")

    def reads(X, W, h):
        r = []
        for tap in (1, 0, 2):
            for half in range(2):
                r.append(f"ds_read_b64_tr_b16 v[{W+4*tap+2*half}:{W+4*tap+2*half+1}], v{VW} offset:{tap*8192 + h*4096 + half*1024}")
        xs = [f"ds_read_b128 v[{X+4*s}:{X+4*s+3}], v{VX1 if h else VX0} offset:{s*2048}" for s in range(8)]
        return [r[0], r[1], xs[0], r[2], r[3], xs[1], r[4], r[5]] + xs[2:]

    def mfmas(X, W):
        m = []
        for s in range(8):
            for tap in (1, 0, 2):
                o = s + 1 - tap
                if 0 <= o <= 7:
                    m.append(f"v_mfma_f32_32x32x16_bf16 v[{ACC+16*o}:{ACC+16*o+15}], v[{W+4*tap}:{W+4*tap+3}], v[{X+4*s}:{X+4*s+3}], v[{ACC+16*o}:{ACC+16*o+15}]")
        return m

    def step(X, W, rd, pre=()):
        m = mfmas(X, W)
        rd = list(rd)
        for i, x in enumerate(m):
            if not nomfma: a(x)
            if i == 0:
                for p in pre: a(p)
            if rd: a(rd.pop(0))
        assert not rd
        a("s_waitcnt lgkmcnt(0)")

    a("s_barrier")
    stamp(1)
    for r in reads(XA, WA, 0): a(r)
    a("s_waitcnt lgkmcnt(0)")
    a(".p2align 3")
    a.label("L_loop")
    step(XA, WA, reads(XB, WB, 1),
         pre=[f"s_add_u32 s50, s50, {SLOT}", f"s_cmp_eq_u32 s50, {4*SLOT}", "s_cselect_b32 s50, 0, s50", "s_add_u32 s53, s53, 1"])
    step(XB, WB, reads(XA, WA, 0),
         pre=[f"v_add_u32 v{VX0}, s50, v{BX0}", f"v_add_u32 v{VX1}, s50, v{BX1}", f"v_add_u32 v{VW}, s50, v{BW}", "s_barrier"])
    a(f"s_cmp_lt_u32 s53, {NST-1}")
    a("s_cbranch_scc1 L_loop")
    step(XA, WA, reads(XB, WB, 1))
    step(XB, WB, [])
    stamp(2)
    a("s_mov_b32 s36, 0xbfb8aa3b")
    a("s_nop 7")
    T = 0
    for s in range(8):
        A = ACC + 16 * s
        P = 48 + 8 * (s & 1)
        if not noepi:
            for r in range(16): a(f"v_fma_f32 v{A+r}, v{A+r}, v{SC+r}, v{SH+r}")
            for r in range(16): a(f"v_mul_f32 v{T+r}, s36, v{A+r}")
            for r in range(16): a(f"v_exp_f32 v{T+r}, v{T+r}")
            for r in range(16): a(f"v_add_f32 v{T+r}, 1.0, v{T+r}")
            for r in range(16): a(f"v_rcp_f32 v{T+r}, v{T+r}")
            for r in range(16): a(f"v_mul_f32 v{A+r}, v{A+r}, v{T+r}")
        for r in range(8): a(f"v_cvt_pk_bf16_f32 v{P+r}, v{A+2*r}, v{A+2*r+1}")
        a(f"s_mov_b32 s37, {(s>>1)*4096}")
        a(f"buffer_store_dwordx4 v[{P}:{P+3}], v{VOUT}, s[12:15], s37 offen offset:{(s&1)*2048}")
        a(f"buffer_store_dwordx4 v[{P+4}:{P+7}], v{VOUT}, s[12:15], s37 offen offset:{(s&1)*2048+32}")
    stamp(3)
    if stamps:
        a("s_waitcnt vmcnt(0)")
        stamp(4)
        a("s_cmp_eq_u32 s18, 0")
        a("s_cbranch_scc0 L_end")
        a("s_lshl_b32 s36, s2, 7")
        a("v_mov_b32 v1, s36")
        for j in range(5):
            for q in range(4): a(f"v_mov_b32 v{4+q}, s{60+4*j+q}")
            a(f"global_store_dwordx4 v1, v[4:7], s[34:35] offset:{16*j}")
            a("s_nop 2")
    a.label("L_end")
    a("s_endpgm")

    out = HEADER
    out += "; Override launch geometry by editing the next line (default: block=256,\n"
    out += "; @launch grid=(256,1,1) block=(512,1,1) lds=163840\n"
    out += '.amdgcn_target "amdgcn-amd-amdhsa--gfx950"\n.text\n'
    out += f".globl {KNAME}\n.p2align 8\n.type {KNAME},@function\n"
    out += a.text()
    out += f""".section .rodata,"a"
.p2align 6
.amdhsa_kernel {KNAME}
  .amdhsa_next_free_vgpr 256
  .amdhsa_next_free_sgpr 96
  .amdhsa_accum_offset 256
  .amdhsa_group_segment_fixed_size 0
  .amdhsa_kernarg_size 72
  .amdhsa_user_sgpr_count 2
  .amdhsa_user_sgpr_kernarg_segment_ptr 1
  .amdhsa_system_sgpr_workgroup_id_x 1
  .amdhsa_float_denorm_mode_32 3
.end_amdhsa_kernel
"""
    return out

if __name__ == "__main__":
    kw = {}
    for x in sys.argv[2:]:
        k, v = x.split("=")
        kw[k] = eval(v)
    open(sys.argv[1], "w").write(gen(**kw))
```

```python
import sys

HEADER = open("standalone__batchnorm__sampling.s.ref").read().split("; Override launch")[0]
KNAME = "standalone__batchnorm__sampling_kernel"

class Asm:
    def __init__(self):
        self.l = []
    def __call__(self, s):
        self.l.append("    " + s)
    def label(self, s):
        self.l.append(s + ":")
    def text(self):
        return "\n".join(self.l) + "\n"

def gen(stamps=False, prio_c=0, prio_l=0, noepi=False, xpol="", wpol="", nomfma=False, ldstamps=False, rot=None):
    a = Asm()
    SLOT = 40960
    NST = 32
    ACC = 128
    XA, XB = 0, 32
    WA, WB = 64, 76
    SC, SH = 88, 104
    VX0, VX1, VW = 120, 121, 122
    BX0, BX1, BW = 123, 124, 125
    VOUT = 126
    VT = 127

    def stamp(j):
        if not stamps: return
        a(f"s_memtime s[40:41]")
        a(f"s_memrealtime s[42:43]")
        a(f"s_waitcnt lgkmcnt(0)")
        a(f"s_mov_b32 s{60+4*j}, s40"); a(f"s_mov_b32 s{61+4*j}, s41")
        a(f"s_mov_b32 s{62+4*j}, s42"); a(f"s_mov_b32 s{63+4*j}, s43")

    a.label(KNAME)
    a("s_cmp_ge_u32 s2, 256")
    a("s_cbranch_scc1 L_end")
    stamp(0)
    a("s_load_dwordx4 s[20:23], s[0:1], 0")
    a("s_load_dwordx8 s[24:31], s[0:1], 16")
    a("s_load_dwordx2 s[32:33], s[0:1], 48")
    if stamps: a("s_load_dwordx2 s[34:35], s[0:1], 64")
    a("v_lshrrev_b32 v1, 6, v0")
    a("s_and_b32 s19, s2, 7")
    a("v_readfirstlane_b32 s18, v1")
    a("s_lshr_b32 s3, s2, 3")
    a("s_lshr_b32 s16, s19, 1")
    a("s_lshl_b32 s16, s16, 3")
    a("s_and_b32 s36, s3, 7")
    a("s_add_u32 s16, s16, s36")
    a("s_and_b32 s17, s19, 1")
    a("s_lshl_b32 s17, s17, 2")
    a("s_lshr_b32 s36, s3, 3")
    a("s_add_u32 s17, s17, s36")
    a("v_and_b32 v0, 63, v0")
    a("s_lshl_b32 s36, s16, 19")
    a("s_waitcnt lgkmcnt(0)")
    a("s_add_u32 s4, s20, s36"); a("s_addc_u32 s5, s21, 0"); a("s_mov_b32 s6, 524288"); a("s_mov_b32 s7, 0x20000")
    a("s_mov_b32 s8, s22"); a("s_mov_b32 s9, s23"); a("s_mov_b32 s10, 6291456"); a("s_mov_b32 s11, 0x20000")
    a("s_add_u32 s12, s32, s36"); a("s_addc_u32 s13, s33, 0"); a("s_mov_b32 s14, 524288"); a("s_mov_b32 s15, 0x20000")
    a("s_cmp_ge_u32 s18, 4")
    a("s_cbranch_scc0 L_compute")

    if prio_l: a(f"s_setprio {prio_l}")
    a("s_sub_u32 s18, s18, 4")
    a("v_lshrrev_b32 v1, 2, v0")
    a("v_lshlrev_b32 v1, 14, v1")
    a("v_lshrrev_b32 v2, 4, v0")
    a("v_xor_b32 v3, v0, v2")
    a("v_and_b32 v3, 3, v3")
    a("v_lshlrev_b32 v3, 4, v3")
    a("s_lshl_b32 s36, s18, 12")
    a("v_add3_u32 v1, v1, v3, s36")
    a("v_lshlrev_b32 v3, 2, v2")
    a("v_and_b32 v4, 15, v0")
    a("v_xor_b32 v3, v3, v4")
    a("v_lshlrev_b32 v3, 4, v3")
    a("v_lshlrev_b32 v2, 11, v2")
    a("s_lshl_b32 s36, s18, 14")
    a("s_lshl_b32 s37, s17, 8")
    a("s_add_u32 s36, s36, s37")
    a("v_add3_u32 v2, v2, v3, s36")
    if rot == "xcd":
        a("s_lshl_b32 s44, s19, 8"); a("s_lshl_b32 s45, s19, 18")
    elif rot == "bt":
        a("s_and_b32 s44, s16, 7"); a("s_lshl_b32 s45, s44, 18"); a("s_lshl_b32 s44, s44, 8")
    else:
        a("s_mov_b32 s44, 0"); a("s_mov_b32 s45, 0")
    a("s_lshl_b32 s48, s18, 12")
    a("s_lshl_b32 s49, s18, 11")
    a("s_add_u32 s49, s49, 16384")
    a("s_mov_b32 s50, 0")

    def issue():
        a("s_add_u32 s46, s50, s48")
        a("s_add_u32 s47, s50, s49")
        a("s_add_u32 s51, s44, 262144")
        seq = []
        for tap in (1, 0, 2):
            for j in range(2):
                seq.append(("w", tap, j))
        xs = [("x", 0, 0), ("x", 0, 1), ("x", 1, 0), ("x", 1, 1)]
        order = [seq[0], seq[1], xs[0], xs[2], seq[2], seq[3], xs[1], xs[3], seq[4], seq[5]]
        for o in order:
            if o[0] == "x":
                _, bh, sidx = o
                a(f"s_add_u32 m0, s46, {bh*1024}")
                off = " offset:2048" if sidx else ""
                a("s_nop 0")
                a(f"buffer_load_dwordx4 v1, s[4:7], {'s51' if bh else 's44'} offen{off}{xpol} lds")
            else:
                _, tap, j = o
                a(f"s_add_u32 m0, s47, {tap*8192 + j*1024}")
                a(f"s_add_u32 s52, s45, {tap*2097152 + j*8192}")
                a(f"buffer_load_dwordx4 v2, s[8:11], s52 offen{wpol} lds")
        a("s_add_u32 s44, s44, 64")
        a("s_add_u32 s45, s45, 65536")
        if rot:
            a("s_and_b32 s44, s44, 2047"); a("s_and_b32 s45, s45, 0x1fffff")
        a(f"s_add_u32 s50, s50, {SLOT}")
        a(f"s_cmp_eq_u32 s50, {4*SLOT}")
        a("s_cselect_b32 s50, 0, s50")

    issue(); issue(); issue()
    if ldstamps:
        def lst(reg, n):
            a("s_memtime s[40:41]"); a("s_memrealtime s[42:43]"); a("s_waitcnt lgkmcnt(0)")
            a(f"v_writelane_b32 v{reg}, s40, {n}"); a(f"v_writelane_b32 v{reg+1}, s42, {n}")
        a("v_mov_b32 v10, 0"); a("v_mov_b32 v11, 0")
        a("v_writelane_b32 v10, s60, 63"); a("v_writelane_b32 v11, s62, 63")
        for n in range(NST):
            a(f"s_waitcnt vmcnt({min(20, 10 * (NST - 1 - n))})")
            if n < 31: lst(10, 32 + n)
            a("s_barrier")
            lst(10, n)
            if n < NST - 3: issue()
        a("s_cmp_eq_u32 s18, 0"); a("s_cbranch_scc0 L_end")
        a("s_lshl_b32 s36, s2, 9"); a("s_add_u32 s36, s36, 65536")
        a("v_lshl_add_u32 v1, v0, 3, s36")
        a("global_store_dwordx2 v1, v[10:11], s[34:35]")
        a("s_endpgm")
    else:
        a("s_mov_b32 s53, 0")
        a.label("L_ld_loop")
        a("s_waitcnt vmcnt(20)")
        a("s_barrier")
        issue()
        a("s_add_u32 s53, s53, 1")
        a(f"s_cmp_lt_u32 s53, {NST-3}")
        a("s_cbranch_scc1 L_ld_loop")
        a("s_waitcnt vmcnt(20)"); a("s_barrier")
        a("s_waitcnt vmcnt(10)"); a("s_barrier")
        a("s_waitcnt vmcnt(0)"); a("s_barrier")
        a("s_endpgm")

    a.label("L_compute")
    if prio_c: a(f"s_setprio {prio_c}")
    a("v_lshrrev_b32 v1, 5, v0")
    a("s_lshl_b32 s36, s17, 8")
    a("s_lshl_b32 s37, s18, 6")
    a("s_add_u32 s36, s36, s37")
    a("v_lshlrev_b32 v2, 4, v1")
    a("v_add_u32 v2, s36, v2")
    for k in range(4):
        a(f"global_load_dwordx4 v[{8+8*k}:{11+8*k}], v2, s[{24+2*k}:{25+2*k}]")
        a(f"global_load_dwordx4 v[{12+8*k}:{15+8*k}], v2, s[{24+2*k}:{25+2*k}] offset:32")
    a("v_and_b32 v3, 31, v0")
    a(f"v_lshl_add_u32 v{VOUT}, v3, 14, v2")
    a("v_lshrrev_b32 v4, 2, v3")
    a("v_and_b32 v4, 3, v4")
    a("v_xor_b32 v4, v4, v1")
    a("v_lshlrev_b32 v4, 4, v4")
    a(f"v_lshl_add_u32 v{BX0}, v3, 6, v4")
    a(f"v_xor_b32 v{BX1}, 32, v{BX0}")
    a("v_bfe_u32 v4, v0, 2, 2")
    a("v_lshl_add_u32 v5, v1, 3, v4")
    a("v_lshlrev_b32 v5, 8, v5")
    a("v_xor_b32 v4, s18, v4")
    a("v_lshl_add_u32 v5, v4, 6, v5")
    a("v_bfe_u32 v4, v0, 4, 1")
    a("v_lshl_add_u32 v5, v4, 5, v5")
    a("v_and_b32 v4, 1, v0")
    a("v_lshl_add_u32 v5, v4, 4, v5")
    a("v_bfe_u32 v4, v0, 1, 1")
    a("v_lshl_add_u32 v5, v4, 3, v5")
    a(f"v_add_u32 v{BW}, 16384, v5")
    for r in range(128):
        a(f"v_mov_b32 v{ACC+r}, 0")
    a("s_waitcnt vmcnt(0)")
    a("s_mov_b32 s36, 0xffff0000")
    a("s_mov_b32 s37, 0x3727c5ac")
    for r in range(16):
        dw, hi = r >> 1, r & 1
        def unpack(dst, base):
            if hi: a(f"v_and_b32 v{dst}, s36, v{base+dw}")
            else: a(f"v_lshlrev_b32 v{dst}, 16, v{base+dw}")
        def rnd(x):
            a(f"v_cvt_pk_bf16_f32 v{x}, v{x}, v{x}")
            a(f"v_and_b32 v{x}, s36, v{x}")
        unpack(40, 16); unpack(41, 24); unpack(42, 8); unpack(43, 32)
        a("v_add_f32 v40, s37, v40"); rnd(40)
        a("v_sqrt_f32 v40, v40"); a("s_nop 0"); rnd(40)
        a("v_rcp_f32 v40, v40"); a("s_nop 0"); rnd(40)
        a(f"v_mul_f32 v{SC+r}, v41, v40"); rnd(SC + r)
        a(f"v_fma_f32 v{SH+r}, -v42, v{SC+r}, v43")
    a(f"v_mov_b32 v{VX0}, v{BX0}"); a(f"v_mov_b32 v{VX1}, v{BX1}"); a(f"v_mov_b32 v{VW}, v{BW}")
    a("s_mov_b32 s50, 0")
    a("s_mov_b32 s53, 0")

    def reads(X, W, h):
        r = []
        for tap in (1, 0, 2):
            for half in range(2):
                r.append(f"ds_read_b64_tr_b16 v[{W+4*tap+2*half}:{W+4*tap+2*half+1}], v{VW} offset:{tap*8192 + h*4096 + half*1024}")
        xs = [f"ds_read_b128 v[{X+4*s}:{X+4*s+3}], v{VX1 if h else VX0} offset:{s*2048}" for s in range(8)]
        return [r[0], r[1], xs[0], r[2], r[3], xs[1], r[4], r[5]] + xs[2:]

    def mfmas(X, W):
        m = []
        for s in range(8):
            for tap in (1, 0, 2):
                o = s + 1 - tap
                if 0 <= o <= 7:
                    m.append(f"v_mfma_f32_32x32x16_bf16 v[{ACC+16*o}:{ACC+16*o+15}], v[{W+4*tap}:{W+4*tap+3}], v[{X+4*s}:{X+4*s+3}], v[{ACC+16*o}:{ACC+16*o+15}]")
        return m

    def step(X, W, rd, pre=()):
        m = mfmas(X, W)
        rd = list(rd)
        for i, x in enumerate(m):
            if not nomfma: a(x)
            if i == 0:
                for p in pre: a(p)
            if rd: a(rd.pop(0))
        assert not rd
        a("s_waitcnt lgkmcnt(0)")

    a("s_barrier")
    stamp(1)
    for r in reads(XA, WA, 0): a(r)
    a("s_waitcnt lgkmcnt(0)")
    a(".p2align 3")
    a.label("L_loop")
    step(XA, WA, reads(XB, WB, 1),
         pre=[f"s_add_u32 s50, s50, {SLOT}", f"s_cmp_eq_u32 s50, {4*SLOT}", "s_cselect_b32 s50, 0, s50", "s_add_u32 s53, s53, 1"])
    step(XB, WB, reads(XA, WA, 0),
         pre=[f"v_add_u32 v{VX0}, s50, v{BX0}", f"v_add_u32 v{VX1}, s50, v{BX1}", f"v_add_u32 v{VW}, s50, v{BW}", "s_barrier"])
    a(f"s_cmp_lt_u32 s53, {NST-1}")
    a("s_cbranch_scc1 L_loop")
    step(XA, WA, reads(XB, WB, 1))
    step(XB, WB, [])
    stamp(2)
    a("s_mov_b32 s36, 0xbfb8aa3b")
    a("s_nop 7")
    T = 0
    for s in range(8):
        A = ACC + 16 * s
        P = 48 + 8 * (s & 1)
        if not noepi:
            for r in range(16): a(f"v_fma_f32 v{A+r}, v{A+r}, v{SC+r}, v{SH+r}")
            for r in range(16): a(f"v_mul_f32 v{T+r}, s36, v{A+r}")
            for r in range(16): a(f"v_exp_f32 v{T+r}, v{T+r}")
            for r in range(16): a(f"v_add_f32 v{T+r}, 1.0, v{T+r}")
            for r in range(16): a(f"v_rcp_f32 v{T+r}, v{T+r}")
            for r in range(16): a(f"v_mul_f32 v{A+r}, v{A+r}, v{T+r}")
        for r in range(8): a(f"v_cvt_pk_bf16_f32 v{P+r}, v{A+2*r}, v{A+2*r+1}")
        a(f"s_mov_b32 s37, {(s>>1)*4096}")
        a(f"buffer_store_dwordx4 v[{P}:{P+3}], v{VOUT}, s[12:15], s37 offen offset:{(s&1)*2048}")
        a(f"buffer_store_dwordx4 v[{P+4}:{P+7}], v{VOUT}, s[12:15], s37 offen offset:{(s&1)*2048+32}")
    stamp(3)
    if stamps:
        a("s_waitcnt vmcnt(0)")
        stamp(4)
        a("s_cmp_eq_u32 s18, 0")
        a("s_cbranch_scc0 L_end")
        a("s_lshl_b32 s36, s2, 7")
        a("v_mov_b32 v1, s36")
        for j in range(5):
            for q in range(4): a(f"v_mov_b32 v{4+q}, s{60+4*j+q}")
            a(f"global_store_dwordx4 v1, v[4:7], s[34:35] offset:{16*j}")
            a("s_nop 2")
    a.label("L_end")
    a("s_endpgm")

    out = HEADER
    out += "; Override launch geometry by editing the next line (default: block=256,\n"
    out += "; @launch grid=(256,1,1) block=(512,1,1) lds=163840\n"
    out += '.amdgcn_target "amdgcn-amd-amdhsa--gfx950"\n.text\n'
    out += f".globl {KNAME}\n.p2align 8\n.type {KNAME},@function\n"
    out += a.text()
    out += f""".section .rodata,"a"
.p2align 6
.amdhsa_kernel {KNAME}
  .amdhsa_next_free_vgpr 256
  .amdhsa_next_free_sgpr 96
  .amdhsa_accum_offset 256
  .amdhsa_group_segment_fixed_size 0
  .amdhsa_kernarg_size 72
  .amdhsa_user_sgpr_count 2
  .amdhsa_user_sgpr_kernarg_segment_ptr 1
  .amdhsa_system_sgpr_workgroup_id_x 1
  .amdhsa_float_denorm_mode_32 3
.end_amdhsa_kernel
"""
    return out

if __name__ == "__main__":
    kw = {}
    for x in sys.argv[2:]:
        k, v = x.split("=")
        kw[k] = eval(v)
    open(sys.argv[1], "w").write(gen(**kw))
```

```python
import sys
from gen1 import Asm, HEADER, KNAME

XSLOT = 32768
WBASE = 65536
WSLOT = 24576
NST = 32

def gen(stamps=False, ldstamps=False, prio_c=0, prio_l=0, pfd=4, stpol=" sc1", xpol="", wpol="", pfpol="", first_touch=True, pk=True, noepi=False, order="o", nwslot=4, old=10, nodma='', nords='', nobar=False):
    a = Asm()
    ACC = 128
    XR = 0
    WA, WB = 32, 56
    SC, SH = 80, 88
    VX0, VX1, VW0, VW1 = 96, 97, 98, 99
    BW0 = 100
    VOUT = 101
    T = 104

    def stamp(j):
        if not stamps: return
        a("s_memtime s[40:41]"); a("s_memrealtime s[42:43]"); a("s_waitcnt lgkmcnt(0)")
        for q in range(4): a(f"s_mov_b32 s{60+4*j+q}, s{40+q}")

    a.label(KNAME)
    a("s_cmp_ge_u32 s2, 256")
    a("s_cbranch_scc1 L_end")
    stamp(0)
    a("s_load_dwordx4 s[20:23], s[0:1], 0")
    a("s_load_dwordx8 s[24:31], s[0:1], 16")
    a("s_load_dwordx2 s[32:33], s[0:1], 48")
    if stamps: a("s_load_dwordx2 s[34:35], s[0:1], 64")
    a("v_lshrrev_b32 v1, 6, v0")
    a("s_and_b32 s19, s2, 7")
    a("v_readfirstlane_b32 s18, v1")
    a("s_lshr_b32 s3, s2, 3")
    a("s_lshr_b32 s16, s19, 1"); a("s_lshl_b32 s16, s16, 3"); a("s_and_b32 s36, s3, 7"); a("s_add_u32 s16, s16, s36")
    a("s_and_b32 s17, s19, 1"); a("s_lshl_b32 s17, s17, 2"); a("s_lshr_b32 s36, s3, 3"); a("s_add_u32 s17, s17, s36")
    a("v_and_b32 v0, 63, v0")
    a("s_and_b32 s38, s18, 3")
    a("s_and_b32 s36, s17, 3"); a("s_lshl_b32 s36, s36, 6"); a("s_lshl_b32 s37, s38, 4"); a("s_add_u32 s36, s36, s37")
    a("v_add_u32 v5, s36, v0"); a("v_lshlrev_b32 v5, 11, v5")
    a("s_and_b32 s36, s16, 7"); a("s_mul_i32 s36, s36, 48"); a("s_mul_i32 s37, s38, 12"); a("s_add_u32 s36, s36, s37")
    a("v_min_u32 v6, 11, v0"); a("v_add_u32 v6, s36, v6")
    a("v_lshrrev_b32 v7, 7, v6"); a("v_lshlrev_b32 v7, 21, v7")
    a("v_bfe_u32 v8, v6, 1, 6"); a("v_lshl_add_u32 v7, v8, 11, v7")
    a("v_and_b32 v8, 1, v6"); a("v_lshl_add_u32 v7, v8, 7, v7")
    a("s_lshl_b32 s37, s17, 8"); a("v_add_u32 v6, s37, v7")
    a("s_lshl_b32 s36, s16, 19")
    a("s_waitcnt lgkmcnt(0)")
    a("s_add_u32 s4, s20, s36"); a("s_addc_u32 s5, s21, 0"); a("s_mov_b32 s6, 524288"); a("s_mov_b32 s7, 0x20000")
    a("s_mov_b32 s8, s22"); a("s_mov_b32 s9, s23"); a("s_mov_b32 s10, 6291456"); a("s_mov_b32 s11, 0x20000")
    a("s_add_u32 s12, s32, s36"); a("s_addc_u32 s13, s33, 0"); a("s_mov_b32 s14, 524288"); a("s_mov_b32 s15, 0x20000")

    def touch(xs, ws_, dst):
        a("s_mov_b64 exec, 0xffff")
        a(f"buffer_load_dword v{dst}, v5, s[4:7], {xs} offen{pfpol}")
        a("s_mov_b64 exec, 0xfff")
        a(f"buffer_load_dword v{dst+1}, v6, s[8:11], {ws_} offen{pfpol}")
        a("s_mov_b64 exec, -1")

    a("s_cmp_ge_u32 s18, 4")
    a("s_cbranch_scc0 L_compute")

    if prio_l: a(f"s_setprio {prio_l}")
    a("v_lshrrev_b32 v2, 4, v0")
    a("v_lshrrev_b32 v1, 3, v0"); a("v_lshlrev_b32 v1, 14, v1")
    a("v_xor_b32 v3, v0, v2"); a("v_and_b32 v3, 7, v3"); a("v_lshlrev_b32 v3, 4, v3")
    a("s_lshl_b32 s36, s38, 12")
    a("v_add3_u32 v1, v1, v3, s36")
    a("v_xor_b32 v9, 64, v1")
    a("v_lshlrev_b32 v3, 2, v2"); a("s_and_b32 s36, s38, 1"); a("s_lshl_b32 s36, s36, 1"); a("v_or_b32 v3, s36, v3")
    a("v_and_b32 v4, 15, v0"); a("v_xor_b32 v3, v3, v4"); a("v_lshlrev_b32 v3, 4, v3")
    a("v_lshlrev_b32 v2, 11, v2")
    a("s_lshl_b32 s36, s38, 14"); a("s_lshl_b32 s37, s17, 8"); a("s_add_u32 s36, s36, s37")
    a("v_add3_u32 v2, v2, v3, s36")
    a("s_mov_b32 s44, 0")
    a("s_mov_b32 s45, 0")
    a("s_lshl_b32 s46, s38, 13")
    a("s_lshl_b32 s49, s38, 11"); a(f"s_add_u32 s49, s49, {WBASE}")
    a("s_mov_b32 s50, 0")
    a(f"s_mov_b32 s54, {pfd*128}"); a(f"s_mov_b32 s55, {pfd*131072}")

    def issue_x():
        for sidx in range(2):
            for e in range(4):
                a(f"s_add_u32 m0, s46, {sidx*4096 + e*1024}")
                a(f"s_add_u32 s52, s44, {sidx*2048 + e*131072}")
                a(f"buffer_load_dwordx4 v{9 if e & 1 else 1}, s[4:7], s52 offen{xpol} lds")
        a("s_add_u32 s44, s44, 128")
        a(f"s_xor_b32 s46, s46, {XSLOT}")
    def issue_w():
        a("s_add_u32 s47, s50, s49")
        for tap in range(3):
            for j in range(2):
                a(f"s_add_u32 m0, s47, {tap*8192 + j*1024}")
                a(f"s_add_u32 s52, s45, {tap*2097152 + j*8192}")
                a(f"buffer_load_dwordx4 v2, s[8:11], s52 offen{wpol} lds")
        a("s_add_u32 s45, s45, 65536")
        a(f"s_add_u32 s50, s50, {WSLOT}")
        a(f"s_cmp_eq_u32 s50, {nwslot*WSLOT}")
        a("s_cselect_b32 s50, 0, s50")
    def issue_t():
        touch("s54", "s55", 12)
        a("s_add_u32 s54, s54, 128"); a("s_add_u32 s55, s55, 131072")

    WD = nwslot - 1
    ev = [("w", 0), ("x", 0), ("w", 1), ("x", 1)] + [("w", t) for t in range(2, WD)]
    for t in range(NST):
        ev.append(("bar", t))
        if t % 2 == 0 and t >= 2 and t // 2 + 1 < 16: ev.append(("x", t // 2 + 1))
        if t + WD < NST: ev.append(("w", t + WD))
        if pfd and t % 2 == 0 and t // 2 + pfd < 16: ev.append(("t", t // 2 + pfd))
    cost = {"w": 6, "x": 8, "t": 2}
    waits = {}
    issued = []
    for e in ev:
        if e[0] == "bar":
            t = e[1]
            need = max(i for i, q in enumerate(issued) if q == ("w", t) or q == ("x", t // 2))
            waits[t] = sum(cost[q[0]] for q in issued[need + 1:])
        else: issued.append(e)
    def emit_ev(e):
        if e[0] == "bar":
            a(f"s_waitcnt vmcnt({waits[e[1]]})")
            if ldstamps and e[1] < 31: lst(32 + e[1])
            a("s_barrier")
            if ldstamps: lst(e[1])
        elif e[0] == "x":
            if "x" not in nodma or e[1] < 2: issue_x()
        elif e[0] == "w":
            if "w" not in nodma or e[1] < 4: issue_w()
        else: issue_t()
    def lst(n):
        a("s_memtime s[40:41]"); a("s_memrealtime s[42:43]"); a("s_waitcnt lgkmcnt(0)")
        a(f"v_writelane_b32 v10, s40, {n}"); a(f"v_writelane_b32 v11, s42, {n}")
    if ldstamps:
        a("v_mov_b32 v10, 0"); a("v_mov_b32 v11, 0")
        a("v_writelane_b32 v10, s60, 63"); a("v_writelane_b32 v11, s62, 63")
        for e in ev: emit_ev(e)
        a("s_cmp_eq_u32 s38, 0"); a("s_cbranch_scc0 L_end")
        a("s_lshl_b32 s36, s2, 9"); a("s_add_u32 s36, s36, 65536")
        a("v_lshl_add_u32 v1, v0, 3, s36")
        a("global_store_dwordx2 v1, v[10:11], s[34:35]")
    else:
        pro = ev[:ev.index(("bar", 0))]
        pairs = []
        for m in range(16):
            i0 = ev.index(("bar", 2 * m)); i1 = ev.index(("bar", 2 * m + 2)) if m < 15 else len(ev)
            pairs.append(ev[i0:i1])
        sig = [tuple((e[0], waits[e[1]] if e[0] == "bar" else 0) for e in p) for p in pairs]
        for e in pro: emit_ev(e)
        m = 0
        while m < 16:
            n = 1
            while m + n < 16 and sig[m + n] == sig[m]: n += 1
            if n > 2:
                a("s_mov_b32 s53, 0"); a.label(f"L_ld{m}")
                for e in pairs[m]: emit_ev(e)
                a("s_add_u32 s53, s53, 1"); a(f"s_cmp_lt_u32 s53, {n}"); a(f"s_cbranch_scc1 L_ld{m}")
            else:
                for k in range(n):
                    for e in pairs[m + k]: emit_ev(e)
            m += n
    a("s_endpgm")

    a.label("L_compute")
    if prio_c: a(f"s_setprio {prio_c}")
    a("v_lshrrev_b32 v1, 4, v0")
    a("s_lshl_b32 s36, s17, 8"); a("s_lshl_b32 s37, s38, 6"); a("s_add_u32 s36, s36, s37")
    a("v_lshlrev_b32 v2, 3, v1"); a("v_add_u32 v2, s36, v2")
    for k in range(4):
        a(f"global_load_dwordx2 v[{8+4*k}:{9+4*k}], v2, s[{24+2*k}:{25+2*k}]")
        a(f"global_load_dwordx2 v[{10+4*k}:{11+4*k}], v2, s[{24+2*k}:{25+2*k}] offset:32")
    ntouch = 0
    if first_touch and pfd:
        for m in range(0, pfd):
            a(f"s_mov_b32 s54, {m*128}"); a(f"s_mov_b32 s55, {m*131072}")
            touch("s54", "s55", T + 2 * m); ntouch += 2
    a("v_and_b32 v3, 15, v0")
    a("v_lshlrev_b32 v4, 14, v3"); a("v_add_u32 v4, s36, v4")
    a("v_and_b32 v5, 1, v1"); a("v_lshl_add_u32 v4, v5, 5, v4")
    a("v_lshrrev_b32 v5, 1, v1"); a(f"v_lshl_add_u32 v{VOUT}, v5, 4, v4")
    a("v_lshrrev_b32 v4, 1, v3"); a("v_xor_b32 v4, v4, v1"); a("v_lshlrev_b32 v4, 4, v4")
    a(f"v_lshl_add_u32 v{VX0}, v3, 7, v4"); a(f"v_xor_b32 v{VX1}, 64, v{VX0}")
    a("v_bfe_u32 v4, v0, 2, 2")
    a("v_lshl_add_u32 v5, v1, 3, v4"); a("v_lshlrev_b32 v5, 8, v5")
    a("v_and_b32 v6, 1, v1"); a("v_lshl_or_b32 v4, v4, 1, v6"); a("s_lshl_b32 s37, s38, 1"); a("v_xor_b32 v4, s37, v4")
    a("v_lshl_add_u32 v5, v4, 5, v5")
    a("v_and_b32 v4, 3, v0"); a("v_lshl_add_u32 v5, v4, 3, v5")
    a(f"v_add_u32 v{BW0}, {WBASE}, v5")
    a(f"v_mov_b32 v{VW0}, v{BW0}"); a(f"v_xor_b32 v{VW1}, 32, v{BW0}")
    for r in range(128): a(f"v_mov_b32 v{ACC+r}, 0")
    a(f"s_waitcnt vmcnt({ntouch})")
    a("s_mov_b32 s36, 0xffff0000"); a("s_mov_b32 s37, 0x3727c5ac"); a("s_mov_b32 s39, 0xbfb8aa3b")
    for r in range(8):
        dw, hi = r >> 1, r & 1
        def unpack(dst, base):
            if hi: a(f"v_and_b32 v{dst}, s36, v{base+dw}")
            else: a(f"v_lshlrev_b32 v{dst}, 16, v{base+dw}")
        def rnd(x):
            a(f"v_cvt_pk_bf16_f32 v{x}, v{x}, v{x}"); a(f"v_and_b32 v{x}, s36, v{x}")
        unpack(60, 12); unpack(61, 16); unpack(62, 8); unpack(63, 20)
        a("v_add_f32 v60, s37, v60"); rnd(60)
        a("v_sqrt_f32 v60, v60"); a("s_nop 0"); rnd(60)
        a("v_rcp_f32 v60, v60"); a("s_nop 0"); rnd(60)
        a("v_mul_f32 v60, v61, v60"); rnd(60)
        a("v_fma_f32 v63, -v62, v60, v63")
        a(f"v_mul_f32 v{SC+r}, s39, v60"); a(f"v_mul_f32 v{SH+r}, s39, v63")
    a("s_mov_b32 s50, 0"); a("s_mov_b32 s53, 0")

    def acc(s, bh, dh): return ACC + 16 * s + 8 * bh + 4 * dh
    def xread(s, bh, h): return ("X%d" % s, f"ds_read_b128 v[{XR+4*s}:{XR+4*s+3}], v{VX1 if h else VX0} offset:{s*4096 + bh*2048}")
    def wreads(W, tag):
        r = []
        for tap in (1, 2, 0):
            for dh in range(2):
                for half in range(2):
                    b = W + 8 * tap + 4 * dh + 2 * half
                    r.append((f"{tag}{tap}{dh}", f"ds_read_b64_tr_b16 v[{b}:{b+1}], v{VW1 if dh else VW0} offset:{tap*8192 + half*1024}"))
        return r

    class Q:
        def __init__(self): self.q = []; self.age = []; self.on = False
        def issue(self, tag, ins):
            self.q.append(tag); self.age.append(0)
            if self.on and (("x" in nords and tag[0] == "X") or ("w" in nords and tag[0] != "X")): return
            a(ins)
        def tick(self):
            self.age = [x + 1 for x in self.age]
        def need(self, tags):
            idx = [i for i, t in enumerate(self.q) if t in tags]
            if idx:
                m = max(idx + [i for i, x in enumerate(self.age) if x >= old])
                n = len(self.q) - 1 - m
                assert n <= 15
                a(f"s_waitcnt lgkmcnt({n})"); self.q = self.q[m + 1:]; self.age = self.age[m + 1:]
        def drain(self):
            a("s_waitcnt lgkmcnt(0)"); self.q = []; self.age = []
    q = Q()

    def groups(bh, W, tag):
        gs = []
        for o in range(8):
            g = []
            if order == "o":
                it = [(dh, tap) for dh in range(2) for tap in (1, 2, 0)]
            else:
                it = [(dh, tap) for tap in (1, 2, 0) for dh in range(2)]
            for dh, tap in it:
                s = o + tap - 1
                if 0 <= s <= 7:
                    c = acc(o, bh, dh); w = W + 8 * tap + 4 * dh
                    g.append((f"v_mfma_f32_16x16x32_bf16 v[{c}:{c+3}], v[{w}:{w+3}], v[{XR+4*s}:{XR+4*s+3}], v[{c}:{c+3}]", {f"X{s}", f"{tag}{tap}{dh}"}))
            gs.append(g)
        return gs

    a("s_barrier")
    stamp(1)
    for t, r in wreads(WA, "A")[:4]: q.issue(t, r)
    for s in range(2): q.issue(*xread(s, 0, 0))
    for t, r in wreads(WA, "A")[4:]: q.issue(t, r)
    q.drain()
    for s in range(2, 8): q.issue(*xread(s, 0, 0))
    q.drain()

    slot_adv = [f"s_add_u32 s50, s50, {WSLOT}", f"s_cmp_eq_u32 s50, {nwslot*WSLOT}", "s_cselect_b32 s50, 0, s50"]
    def bar(xtoggle):
        l = [f"v_add_u32 v{VW0}, s50, v{BW0}", f"v_xor_b32 v{VW1}, 32, v{VW0}"]
        if xtoggle: l += [f"v_xor_b32 v{VX0}, {XSLOT}, v{VX0}"]
        l += ["s_barrier"]
        return l

    def body(carry, last=False):
        def rp(bh, W, tag, nxt, wnext, pre_bar, extra, carry):
            gs = groups(bh, W, tag)
            pend = list(carry); wl = list(wnext or [])
            for o, g in enumerate(gs):
                for i, (ins, tags) in enumerate(g):
                    q.need(tags)
                    a(ins); q.tick()
                    if extra and o == 0 and i == 2:
                        for x in extra: a(x)
                    if pend and (i == 0 or (o == 0 and i == 1)):
                        q.issue(*pend.pop(0))
                    elif wl and o >= 2 and 1 <= i <= 3:
                        q.issue(*wl.pop(0))
                if o == 1 and pre_bar is not None:
                    q.drain()
                    for x in pre_bar: a(x)
                if nxt is not None and o >= 1: pend.append(xread(o - 1, nxt[0], nxt[1]))
            assert not wl
            if nxt is not None: pend.append(xread(7, nxt[0], nxt[1]))
            return pend
        c = rp(0, WA, "A", (1, 0), None, None, slot_adv, carry)
        c = rp(1, WA, "A", (0, 1), wreads(WB, "B"), bar(False), None, c)
        c = rp(0, WB, "B", (1, 1), None, None, (slot_adv + ["s_add_u32 s53, s53, 1"]) if not last else None, c)
        if not last:
            c = rp(1, WB, "B", (0, 0), wreads(WA, "A"), bar(True), None, c)
        else:
            c = rp(1, WB, "B", None, None, None, None, c)
        return c

    carry0 = [xread(6, 0, 0), xread(7, 0, 0)]
    if nords:
        for t, r in wreads(WB, "B"): q.issue(t, r)
        q.drain()
    q.on = True
    a(".p2align 3")
    a.label("L_loop")
    save = a.l; a.l = []
    q.q = []; q.age = []
    c = body(carry0); steady = list(q.q); sage = list(q.age)
    a.l = save
    q.q = list(steady); q.age = list(sage)
    n0 = len(a.l)
    c = body(carry0)
    assert q.q == steady and [x[0] for x in c] == ["X6", "X7"], (q.q, steady, c)
    a(f"v_xor_b32 v{VX1}, {XSLOT}, v{VX1}")
    a("s_cmp_lt_u32 s53, 15")
    a("s_cbranch_scc1 L_loop")
    body(carry0, last=True)
    stamp(2)

    a("s_mov_b32 s40, 0xbfb8aa3b"); a("s_mov_b32 s41, 0xbfb8aa3b")
    a("s_waitcnt vmcnt(0)")
    a("s_nop 7")
    k = 0
    for bh in range(2):
        for s in range(8):
            A = acc(s, bh, 0); P = T + 8 + 4 * (k & 3); TT = T; k += 1
            if not noepi:
                if pk:
                    for r in range(0, 8, 2): a(f"v_pk_fma_f32 v[{A+r}:{A+r+1}], v[{A+r}:{A+r+1}], v[{SC+r}:{SC+r+1}], v[{SH+r}:{SH+r+1}]")
                    for r in range(8): a(f"v_exp_f32 v{TT+r}, v{A+r}")
                    for r in range(0, 8, 2): a(f"v_pk_fma_f32 v[{TT+r}:{TT+r+1}], v[{TT+r}:{TT+r+1}], s[40:41], s[40:41]")
                    for r in range(8): a(f"v_rcp_f32 v{TT+r}, v{TT+r}")
                    for r in range(0, 8, 2): a(f"v_pk_mul_f32 v[{A+r}:{A+r+1}], v[{A+r}:{A+r+1}], v[{TT+r}:{TT+r+1}]")
                else:
                    for r in range(8): a(f"v_fma_f32 v{A+r}, v{A+r}, v{SC+r}, v{SH+r}")
                    for r in range(8): a(f"v_exp_f32 v{TT+r}, v{A+r}")
                    for r in range(8): a(f"v_fma_f32 v{TT+r}, v{TT+r}, s40, s40")
                    for r in range(8): a(f"v_rcp_f32 v{TT+r}, v{TT+r}")
                    for r in range(8): a(f"v_mul_f32 v{A+r}, v{A+r}, v{TT+r}")
            for r in range(4): a(f"v_cvt_pk_bf16_f32 v{P+r}, v{A+2*r}, v{A+2*r+1}")
            a(f"s_mov_b32 s37, {bh*262144 + (s>>1)*4096}")
            a("s_nop 0")
            a(f"v_permlane16_swap_b32 v{P}, v{P+2}")
            a(f"v_permlane16_swap_b32 v{P+1}, v{P+3}")
            a(f"buffer_store_dwordx4 v[{P}:{P+3}], v{VOUT}, s[12:15], s37 offen offset:{(s&1)*2048}{stpol}")
    stamp(3)
    if stamps:
        a("s_waitcnt vmcnt(0)")
        stamp(4)
        a("s_cmp_eq_u32 s18, 0"); a("s_cbranch_scc0 L_end")
        a("s_lshl_b32 s36, s2, 7"); a("v_mov_b32 v1, s36")
        for j in range(5):
            for qq in range(4): a(f"v_mov_b32 v{4+qq}, s{60+4*j+qq}")
            a(f"global_store_dwordx4 v1, v[4:7], s[34:35] offset:{16*j}"); a("s_nop 2")
    a.label("L_end")
    a("s_endpgm")

    out = HEADER
    out += "; Override launch geometry by editing the next line (default: block=256,\n"
    out += "; @launch grid=(256,1,1) block=(512,1,1) lds=163840\n"
    out += '.amdgcn_target "amdgcn-amd-amdhsa--gfx950"\n.text\n'
    out += f".globl {KNAME}\n.p2align 8\n.type {KNAME},@function\n"
    out += a.text()
    out += f""".section .rodata,"a"
.p2align 6
.amdhsa_kernel {KNAME}
  .amdhsa_next_free_vgpr 256
  .amdhsa_next_free_sgpr 96
  .amdhsa_accum_offset 256
  .amdhsa_group_segment_fixed_size 0
  .amdhsa_kernarg_size 72
  .amdhsa_user_sgpr_count 2
  .amdhsa_user_sgpr_kernarg_segment_ptr 1
  .amdhsa_system_sgpr_workgroup_id_x 1
  .amdhsa_float_denorm_mode_32 3
.end_amdhsa_kernel
"""
    return out

if __name__ == "__main__":
    kw = {}
    for x in sys.argv[2:]:
        k, v = x.split("=")
        kw[k] = eval(v)
    open(sys.argv[1], "w").write(gen(**kw))
```

```python
import sys
from gen1 import Asm, HEADER, KNAME

XSLOT = 32768
WBASE = 65536
WSLOT = 24576
NST = 32

def gen(stamps=False, ldstamps=False, prio_c=0, prio_l=0, pfd=4, stpol=" sc1", xpol="", wpol="", pfpol="", first_touch=True, pk=True, noepi=False, order="o", nwslot=4, old=10, nodma='', nords='', nobar=False, dbgst=False, rep=1):
    a = Asm()
    ACC = 128
    XR = 0
    WA, WB = 32, 56
    SC, SH = 80, 88
    VX0, VX1, VW0, VW1 = 96, 97, 98, 99
    BW0 = 100
    VOUT = 101
    T = 104

    def stamp(j):
        if not stamps: return
        a("s_memtime s[40:41]"); a("s_memrealtime s[42:43]"); a("s_waitcnt lgkmcnt(0)")
        for q in range(4): a(f"s_mov_b32 s{60+4*j+q}, s{40+q}")

    a.label(KNAME)
    a("s_cmp_ge_u32 s2, 256")
    a("s_cbranch_scc1 L_end")
    stamp(0)
    a("s_load_dwordx4 s[20:23], s[0:1], 0")
    a("s_load_dwordx8 s[24:31], s[0:1], 16")
    a("s_load_dwordx2 s[32:33], s[0:1], 48")
    if stamps: a(f"s_load_dwordx2 s[34:35], s[0:1], {56 if dbgst else 64}")
    a("v_lshrrev_b32 v1, 6, v0")
    a("s_and_b32 s19, s2, 7")
    a("v_readfirstlane_b32 s18, v1")
    a("s_lshr_b32 s3, s2, 3")
    a("s_lshr_b32 s16, s19, 1"); a("s_lshl_b32 s16, s16, 3"); a("s_and_b32 s36, s3, 7"); a("s_add_u32 s16, s16, s36")
    a("s_and_b32 s17, s19, 1"); a("s_lshl_b32 s17, s17, 2"); a("s_lshr_b32 s36, s3, 3"); a("s_add_u32 s17, s17, s36")
    a("v_and_b32 v0, 63, v0")
    a("s_and_b32 s38, s18, 3")
    a("s_and_b32 s36, s17, 3"); a("s_lshl_b32 s36, s36, 6"); a("s_lshl_b32 s37, s38, 4"); a("s_add_u32 s36, s36, s37")
    a("v_add_u32 v5, s36, v0"); a("v_lshlrev_b32 v5, 11, v5")
    a("s_and_b32 s36, s16, 7"); a("s_mul_i32 s36, s36, 48"); a("s_mul_i32 s37, s38, 12"); a("s_add_u32 s36, s36, s37")
    a("v_min_u32 v6, 11, v0"); a("v_add_u32 v6, s36, v6")
    a("v_lshrrev_b32 v7, 7, v6"); a("v_lshlrev_b32 v7, 21, v7")
    a("v_bfe_u32 v8, v6, 1, 6"); a("v_lshl_add_u32 v7, v8, 11, v7")
    a("v_and_b32 v8, 1, v6"); a("v_lshl_add_u32 v7, v8, 7, v7")
    a("s_lshl_b32 s37, s17, 8"); a("v_add_u32 v6, s37, v7")
    a("s_lshl_b32 s36, s16, 19")
    a("s_waitcnt lgkmcnt(0)")
    a("s_add_u32 s4, s20, s36"); a("s_addc_u32 s5, s21, 0"); a("s_mov_b32 s6, 524288"); a("s_mov_b32 s7, 0x20000")
    a("s_mov_b32 s8, s22"); a("s_mov_b32 s9, s23"); a("s_mov_b32 s10, 6291456"); a("s_mov_b32 s11, 0x20000")
    a("s_add_u32 s12, s32, s36"); a("s_addc_u32 s13, s33, 0"); a("s_mov_b32 s14, 524288"); a("s_mov_b32 s15, 0x20000")

    def touch(xs, ws_, dst):
        a("s_mov_b64 exec, 0xffff")
        a(f"buffer_load_dword v{dst}, v5, s[4:7], {xs} offen{pfpol}")
        a("s_mov_b64 exec, 0xfff")
        a(f"buffer_load_dword v{dst+1}, v6, s[8:11], {ws_} offen{pfpol}")
        a("s_mov_b64 exec, -1")

    a("s_cmp_ge_u32 s18, 4")
    a("s_cbranch_scc0 L_compute")

    if prio_l: a(f"s_setprio {prio_l}")
    a("v_lshrrev_b32 v2, 4, v0")
    a("v_lshrrev_b32 v1, 3, v0"); a("v_lshlrev_b32 v1, 14, v1")
    a("v_xor_b32 v3, v0, v2"); a("v_and_b32 v3, 7, v3"); a("v_lshlrev_b32 v3, 4, v3")
    a("s_lshl_b32 s36, s38, 12")
    a("v_add3_u32 v1, v1, v3, s36")
    a("v_xor_b32 v9, 64, v1")
    a("v_lshlrev_b32 v3, 2, v2"); a("s_and_b32 s36, s38, 1"); a("s_lshl_b32 s36, s36, 1"); a("v_or_b32 v3, s36, v3")
    a("v_and_b32 v4, 15, v0"); a("v_xor_b32 v3, v3, v4"); a("v_lshlrev_b32 v3, 4, v3")
    a("v_lshlrev_b32 v2, 11, v2")
    a("s_lshl_b32 s36, s38, 14"); a("s_lshl_b32 s37, s17, 8"); a("s_add_u32 s36, s36, s37")
    a("v_add3_u32 v2, v2, v3, s36")
    a("s_mov_b32 s44, 0")
    a("s_mov_b32 s45, 0")
    a("s_lshl_b32 s46, s38, 13")
    a("s_lshl_b32 s49, s38, 11"); a(f"s_add_u32 s49, s49, {WBASE}")
    a("s_mov_b32 s50, 0")
    a(f"s_mov_b32 s54, {pfd*128}"); a(f"s_mov_b32 s55, {pfd*131072}")

    def issue_x():
        for sidx in range(2):
            for e in range(4):
                a(f"s_add_u32 m0, s46, {sidx*4096 + e*1024}")
                a(f"s_add_u32 s52, s44, {sidx*2048 + e*131072}")
                a(f"buffer_load_dwordx4 v{9 if e & 1 else 1}, s[4:7], s52 offen{xpol} lds")
        a("s_add_u32 s44, s44, 128")
        a(f"s_xor_b32 s46, s46, {XSLOT}")
    def issue_w():
        a("s_add_u32 s47, s50, s49")
        for tap in range(3):
            for j in range(2):
                a(f"s_add_u32 m0, s47, {tap*8192 + j*1024}")
                a(f"s_add_u32 s52, s45, {tap*2097152 + j*8192}")
                a(f"buffer_load_dwordx4 v2, s[8:11], s52 offen{wpol} lds")
        a("s_add_u32 s45, s45, 65536")
        a(f"s_add_u32 s50, s50, {WSLOT}")
        a(f"s_cmp_eq_u32 s50, {nwslot*WSLOT}")
        a("s_cselect_b32 s50, 0, s50")
    def issue_t():
        touch("s54", "s55", 12)
        a("s_add_u32 s54, s54, 128"); a("s_add_u32 s55, s55, 131072")

    WD = nwslot - 1
    ev = [("w", 0), ("x", 0), ("w", 1), ("x", 1)] + [("w", t) for t in range(2, WD)]
    for t in range(NST):
        ev.append(("bar", t))
        if t % 2 == 0 and t >= 2 and t // 2 + 1 < 16: ev.append(("x", t // 2 + 1))
        if t + WD < NST: ev.append(("w", t + WD))
        if pfd and t % 2 == 0 and t // 2 + pfd < 16: ev.append(("t", t // 2 + pfd))
    cost = {"w": 6, "x": 8, "t": 2}
    waits = {}
    issued = []
    for e in ev:
        if e[0] == "bar":
            t = e[1]
            need = max(i for i, q in enumerate(issued) if q == ("w", t) or q == ("x", t // 2))
            waits[t] = sum(cost[q[0]] for q in issued[need + 1:])
        else: issued.append(e)
    def emit_ev(e):
        if e[0] == "bar":
            a(f"s_waitcnt vmcnt({waits[e[1]]})")
            if ldstamps and e[1] < 31: lst(32 + e[1])
            a("s_barrier")
            if ldstamps: lst(e[1])
        elif e[0] == "x":
            if "x" not in nodma or e[1] < 2: issue_x()
        elif e[0] == "w":
            if "w" not in nodma or e[1] < 4: issue_w()
        else: issue_t()
    def lst(n):
        a("s_memtime s[40:41]"); a("s_memrealtime s[42:43]"); a("s_waitcnt lgkmcnt(0)")
        a(f"v_writelane_b32 v10, s40, {n}"); a(f"v_writelane_b32 v11, s42, {n}")
    if ldstamps:
        a("v_mov_b32 v10, 0"); a("v_mov_b32 v11, 0")
        a("v_writelane_b32 v10, s60, 63"); a("v_writelane_b32 v11, s62, 63")
        for e in ev: emit_ev(e)
        a("s_cmp_eq_u32 s38, 0"); a("s_cbranch_scc0 L_end")
        a("s_lshl_b32 s36, s2, 9"); a("s_add_u32 s36, s36, 65536")
        a("v_lshl_add_u32 v1, v0, 3, s36")
        a("global_store_dwordx2 v1, v[10:11], s[34:35]")
    else:
        pro = ev[:ev.index(("bar", 0))]
        pairs = []
        for m in range(16):
            i0 = ev.index(("bar", 2 * m)); i1 = ev.index(("bar", 2 * m + 2)) if m < 15 else len(ev)
            pairs.append(ev[i0:i1])
        sig = [tuple((e[0], waits[e[1]] if e[0] == "bar" else 0) for e in p) for p in pairs]
        for e in pro: emit_ev(e)
        m = 0
        while m < 16:
            n = 1
            while m + n < 16 and sig[m + n] == sig[m]: n += 1
            if n > 2:
                a("s_mov_b32 s53, 0"); a.label(f"L_ld{m}")
                for e in pairs[m]: emit_ev(e)
                a("s_add_u32 s53, s53, 1"); a(f"s_cmp_lt_u32 s53, {n}"); a(f"s_cbranch_scc1 L_ld{m}")
            else:
                for k in range(n):
                    for e in pairs[m + k]: emit_ev(e)
            m += n
    a("s_endpgm")

    a.label("L_compute")
    if prio_c: a(f"s_setprio {prio_c}")
    a("v_lshrrev_b32 v1, 4, v0")
    a("s_lshl_b32 s36, s17, 8"); a("s_lshl_b32 s37, s38, 6"); a("s_add_u32 s36, s36, s37")
    a("v_lshlrev_b32 v2, 3, v1"); a("v_add_u32 v2, s36, v2")
    for k in range(4):
        a(f"global_load_dwordx2 v[{8+4*k}:{9+4*k}], v2, s[{24+2*k}:{25+2*k}]")
        a(f"global_load_dwordx2 v[{10+4*k}:{11+4*k}], v2, s[{24+2*k}:{25+2*k}] offset:32")
    ntouch = 0
    if first_touch and pfd:
        for m in range(0, pfd):
            a(f"s_mov_b32 s54, {m*128}"); a(f"s_mov_b32 s55, {m*131072}")
            touch("s54", "s55", T + 2 * m); ntouch += 2
    a("v_and_b32 v3, 15, v0")
    a("v_lshlrev_b32 v4, 14, v3"); a("v_add_u32 v4, s36, v4")
    a("v_and_b32 v5, 1, v1"); a("v_lshl_add_u32 v4, v5, 5, v4")
    a("v_lshrrev_b32 v5, 1, v1"); a(f"v_lshl_add_u32 v{VOUT}, v5, 4, v4")
    a("v_lshrrev_b32 v4, 1, v3"); a("v_xor_b32 v4, v4, v1"); a("v_lshlrev_b32 v4, 4, v4")
    a(f"v_lshl_add_u32 v{VX0}, v3, 7, v4"); a(f"v_xor_b32 v{VX1}, 64, v{VX0}")
    a("v_bfe_u32 v4, v0, 2, 2")
    a("v_lshl_add_u32 v5, v1, 3, v4"); a("v_lshlrev_b32 v5, 8, v5")
    a("v_and_b32 v6, 1, v1"); a("v_lshl_or_b32 v4, v4, 1, v6"); a("s_lshl_b32 s37, s38, 1"); a("v_xor_b32 v4, s37, v4")
    a("v_lshl_add_u32 v5, v4, 5, v5")
    a("v_and_b32 v4, 3, v0"); a("v_lshl_add_u32 v5, v4, 3, v5")
    a(f"v_add_u32 v{BW0}, {WBASE}, v5")
    a(f"v_mov_b32 v{VW0}, v{BW0}"); a(f"v_xor_b32 v{VW1}, 32, v{BW0}")
    for r in range(128): a(f"v_mov_b32 v{ACC+r}, 0")
    a(f"s_waitcnt vmcnt({ntouch})")
    a("s_mov_b32 s36, 0xffff0000"); a("s_mov_b32 s37, 0x3727c5ac"); a("s_mov_b32 s39, 0xbfb8aa3b")
    for r in range(8):
        dw, hi = r >> 1, r & 1
        def unpack(dst, base):
            if hi: a(f"v_and_b32 v{dst}, s36, v{base+dw}")
            else: a(f"v_lshlrev_b32 v{dst}, 16, v{base+dw}")
        def rnd(x):
            a(f"v_cvt_pk_bf16_f32 v{x}, v{x}, v{x}"); a(f"v_and_b32 v{x}, s36, v{x}")
        unpack(60, 12); unpack(61, 16); unpack(62, 8); unpack(63, 20)
        a("v_add_f32 v60, s37, v60"); rnd(60)
        a("v_sqrt_f32 v60, v60"); a("s_nop 0"); rnd(60)
        a("v_rcp_f32 v60, v60"); a("s_nop 0"); rnd(60)
        a("v_mul_f32 v60, v61, v60"); rnd(60)
        a("v_fma_f32 v63, -v62, v60, v63")
        a(f"v_mul_f32 v{SC+r}, s39, v60"); a(f"v_mul_f32 v{SH+r}, s39, v63")
    a("s_mov_b32 s50, 0"); a("s_mov_b32 s53, 0")

    def acc(s, bh, dh): return ACC + 16 * s + 8 * bh + 4 * dh
    def xread(s, bh, h): return ("X%d" % s, f"ds_read_b128 v[{XR+4*s}:{XR+4*s+3}], v{VX1 if h else VX0} offset:{s*4096 + bh*2048}")
    def wreads(W, tag):
        r = []
        for tap in (1, 2, 0):
            for dh in range(2):
                for half in range(2):
                    b = W + 8 * tap + 4 * dh + 2 * half
                    r.append((f"{tag}{tap}{dh}", f"ds_read_b64_tr_b16 v[{b}:{b+1}], v{VW1 if dh else VW0} offset:{tap*8192 + half*1024}"))
        return r

    class Q:
        def __init__(self): self.q = []; self.age = []; self.on = False
        def issue(self, tag, ins):
            self.q.append(tag); self.age.append(0)
            if self.on and (("x" in nords and tag[0] == "X") or ("w" in nords and tag[0] != "X")): return
            a(ins)
        def tick(self):
            self.age = [x + 1 for x in self.age]
        def need(self, tags):
            idx = [i for i, t in enumerate(self.q) if t in tags]
            if idx:
                m = max(idx + [i for i, x in enumerate(self.age) if x >= old])
                n = len(self.q) - 1 - m
                assert n <= 15
                a(f"s_waitcnt lgkmcnt({n})"); self.q = self.q[m + 1:]; self.age = self.age[m + 1:]
        def drain(self):
            a("s_waitcnt lgkmcnt(0)"); self.q = []; self.age = []
    q = Q()

    def groups(bh, W, tag):
        gs = []
        for o in range(8):
            g = []
            if order == "o":
                it = [(dh, tap) for dh in range(2) for tap in (1, 2, 0)]
            else:
                it = [(dh, tap) for tap in (1, 2, 0) for dh in range(2)]
            for dh, tap in it:
                s = o + tap - 1
                if 0 <= s <= 7:
                    c = acc(o, bh, dh); w = W + 8 * tap + 4 * dh
                    g.append((f"v_mfma_f32_16x16x32_bf16 v[{c}:{c+3}], v[{w}:{w+3}], v[{XR+4*s}:{XR+4*s+3}], v[{c}:{c+3}]", {f"X{s}", f"{tag}{tap}{dh}"}))
            gs.append(g)
        return gs

    a("s_barrier")
    stamp(1)
    for t, r in wreads(WA, "A")[:4]: q.issue(t, r)
    for s in range(2): q.issue(*xread(s, 0, 0))
    for t, r in wreads(WA, "A")[4:]: q.issue(t, r)
    q.drain()
    for s in range(2, 8): q.issue(*xread(s, 0, 0))
    q.drain()

    slot_adv = [f"s_add_u32 s50, s50, {WSLOT}", f"s_cmp_eq_u32 s50, {nwslot*WSLOT}", "s_cselect_b32 s50, 0, s50"]
    def bar(xtoggle):
        l = [f"v_add_u32 v{VW0}, s50, v{BW0}", f"v_xor_b32 v{VW1}, 32, v{VW0}"]
        if xtoggle: l += [f"v_xor_b32 v{VX0}, {XSLOT}, v{VX0}"]
        l += ["s_barrier"]
        return l

    def body(carry, last=False):
        def rp(bh, W, tag, nxt, wnext, pre_bar, extra, carry):
            gs = groups(bh, W, tag)
            pend = list(carry); wl = list(wnext or [])
            for o, g in enumerate(gs):
                for i, (ins, tags) in enumerate(g):
                    q.need(tags)
                    a(ins); q.tick()
                    if extra and o == 0 and i == 2:
                        for x in extra: a(x)
                    if pend and (i == 0 or (o == 0 and i == 1)):
                        q.issue(*pend.pop(0))
                    elif wl and o >= 2 and 1 <= i <= 3:
                        q.issue(*wl.pop(0))
                if o == 1 and pre_bar is not None:
                    q.drain()
                    for x in pre_bar: a(x)
                if nxt is not None and o >= 1: pend.append(xread(o - 1, nxt[0], nxt[1]))
            assert not wl
            if nxt is not None: pend.append(xread(7, nxt[0], nxt[1]))
            return pend
        c = rp(0, WA, "A", (1, 0), None, None, slot_adv, carry)
        c = rp(1, WA, "A", (0, 1), wreads(WB, "B"), bar(False), None, c)
        c = rp(0, WB, "B", (1, 1), None, None, (slot_adv + ["s_add_u32 s53, s53, 1"]) if not last else None, c)
        if not last:
            c = rp(1, WB, "B", (0, 0), wreads(WA, "A"), bar(True), None, c)
        else:
            c = rp(1, WB, "B", None, None, None, None, c)
        return c

    carry0 = [xread(6, 0, 0), xread(7, 0, 0)]
    if nords:
        for t, r in wreads(WB, "B"): q.issue(t, r)
        q.drain()
    q.on = True
    a(".p2align 3")
    a.label("L_loop")
    save = a.l; a.l = []
    q.q = []; q.age = []
    c = body(carry0); steady = list(q.q); sage = list(q.age)
    a.l = save
    q.q = list(steady); q.age = list(sage)
    n0 = len(a.l)
    c = body(carry0)
    assert q.q == steady and [x[0] for x in c] == ["X6", "X7"], (q.q, steady, c)
    a(f"v_xor_b32 v{VX1}, {XSLOT}, v{VX1}")
    a("s_cmp_lt_u32 s53, 15")
    a("s_cbranch_scc1 L_loop")
    body(carry0, last=True)
    stamp(2)

    a("s_mov_b32 s40, 0xbfb8aa3b"); a("s_mov_b32 s41, 0xbfb8aa3b")
    a("s_waitcnt vmcnt(0)")
    a("s_nop 7")
    k = 0
    for bh in range(2):
        for s in range(8):
            A = acc(s, bh, 0); P = T + 8 + 4 * (k & 3); TT = T; k += 1
            if not noepi:
                if pk:
                    for r in range(0, 8, 2): a(f"v_pk_fma_f32 v[{A+r}:{A+r+1}], v[{A+r}:{A+r+1}], v[{SC+r}:{SC+r+1}], v[{SH+r}:{SH+r+1}]")
                    for r in range(8): a(f"v_exp_f32 v{TT+r}, v{A+r}")
                    for r in range(0, 8, 2): a(f"v_pk_fma_f32 v[{TT+r}:{TT+r+1}], v[{TT+r}:{TT+r+1}], s[40:41], s[40:41]")
                    for r in range(8): a(f"v_rcp_f32 v{TT+r}, v{TT+r}")
                    for r in range(0, 8, 2): a(f"v_pk_mul_f32 v[{A+r}:{A+r+1}], v[{A+r}:{A+r+1}], v[{TT+r}:{TT+r+1}]")
                else:
                    for r in range(8): a(f"v_fma_f32 v{A+r}, v{A+r}, v{SC+r}, v{SH+r}")
                    for r in range(8): a(f"v_exp_f32 v{TT+r}, v{A+r}")
                    for r in range(8): a(f"v_fma_f32 v{TT+r}, v{TT+r}, s40, s40")
                    for r in range(8): a(f"v_rcp_f32 v{TT+r}, v{TT+r}")
                    for r in range(8): a(f"v_mul_f32 v{A+r}, v{A+r}, v{TT+r}")
            for r in range(4): a(f"v_cvt_pk_bf16_f32 v{P+r}, v{A+2*r}, v{A+2*r+1}")
            a(f"s_mov_b32 s37, {bh*262144 + (s>>1)*4096}")
            a("s_nop 0")
            a(f"v_permlane16_swap_b32 v{P}, v{P+2}")
            a(f"v_permlane16_swap_b32 v{P+1}, v{P+3}")
            a(f"buffer_store_dwordx4 v[{P}:{P+3}], v{VOUT}, s[12:15], s37 offen offset:{(s&1)*2048}{stpol}")
    stamp(3)
    if stamps:
        a("s_waitcnt vmcnt(0)")
        stamp(4)
        a("s_cmp_eq_u32 s18, 0"); a("s_cbranch_scc0 L_end")
        if dbgst:
            a("v_mov_b32 v1, 0")
            a("s_mov_b64 exec, 1")
            a("s_sub_u32 s36, -1, s62"); a("v_mov_b32 v4, s36"); a("global_atomic_umax v1, v4, s[34:35]")
            for j in range(5):
                a(f"v_mov_b32 v4, s{62+4*j}"); a(f"global_atomic_umax v1, v4, s[34:35] offset:{4+4*j}")
            for j in range(1, 5):
                a(f"s_sub_u32 s36, s{60+4*j}, s60"); a("v_mov_b32 v4, s36"); a(f"global_atomic_umax v1, v4, s[34:35] offset:{24+4*j}")
            for j in range(1, 5):
                a(f"s_sub_u32 s36, s{62+4*j}, s62"); a("v_mov_b32 v4, s36"); a(f"global_atomic_add v1, v4, s[34:35] offset:{40+4*j}")
            a("s_endpgm")
        a("s_lshl_b32 s36, s2, 7"); a("v_mov_b32 v1, s36")
        for j in range(5):
            for qq in range(4): a(f"v_mov_b32 v{4+qq}, s{60+4*j+qq}")
            a(f"global_store_dwordx4 v1, v[4:7], s[34:35] offset:{16*j}"); a("s_nop 2")
    a.label("L_end")
    a("s_endpgm")

    out = HEADER
    out += "; Override launch geometry by editing the next line (default: block=256,\n"
    out += "; @launch grid=(256,1,1) block=(512,1,1) lds=163840\n"
    out += '.amdgcn_target "amdgcn-amd-amdhsa--gfx950"\n.text\n'
    out += f".globl {KNAME}\n.p2align 8\n.type {KNAME},@function\n"
    out += a.text()
    out += f""".section .rodata,"a"
.p2align 6
.amdhsa_kernel {KNAME}
  .amdhsa_next_free_vgpr 256
  .amdhsa_next_free_sgpr 96
  .amdhsa_accum_offset 256
  .amdhsa_group_segment_fixed_size 0
  .amdhsa_kernarg_size 72
  .amdhsa_user_sgpr_count 2
  .amdhsa_user_sgpr_kernarg_segment_ptr 1
  .amdhsa_system_sgpr_workgroup_id_x 1
  .amdhsa_float_denorm_mode_32 3
.end_amdhsa_kernel
"""
    return out

if __name__ == "__main__":
    kw = {}
    for x in sys.argv[2:]:
        k, v = x.split("=")
        kw[k] = eval(v)
    open(sys.argv[1], "w").write(gen(**kw))
```

```python
import sys
from gen1 import Asm, HEADER, KNAME

XSLOT = 32768
WBASE = 65536
WSLOT = 24576
NST = 32

def gen(stamps=False, ldstamps=False, prio_c=0, prio_l=0, pfd=4, stpol=" sc1", xpol="", wpol="", pfpol="", first_touch=True, pk=True, noepi=False, order="o", nwslot=4, old=10, nodma='', nords='', nobar=False, dbgst=False, rep=1, spin=0):
    a = Asm()
    ACC = 128
    XR = 0
    WA, WB = 32, 56
    SC, SH = 80, 88
    VX0, VX1, VW0, VW1 = 96, 97, 98, 99
    BW0 = 100
    VOUT = 101
    T = 104

    def stamp(j):
        if not stamps: return
        a("s_memtime s[40:41]"); a("s_memrealtime s[42:43]"); a("s_waitcnt lgkmcnt(0)")
        for q in range(4): a(f"s_mov_b32 s{60+4*j+q}, s{40+q}")

    a.label(KNAME)
    a("s_cmp_ge_u32 s2, 256")
    a("s_cbranch_scc1 L_end")
    stamp(0)
    if spin:
        a("s_memrealtime s[44:45]"); a("s_waitcnt lgkmcnt(0)"); a("s_mov_b32 s59, s44")
    a("s_load_dwordx4 s[20:23], s[0:1], 0")
    a("s_load_dwordx8 s[24:31], s[0:1], 16")
    a("s_load_dwordx2 s[32:33], s[0:1], 48")
    if stamps: a(f"s_load_dwordx2 s[34:35], s[0:1], {56 if dbgst else 64}")
    a("v_lshrrev_b32 v1, 6, v0")
    a("s_and_b32 s19, s2, 7")
    a("v_readfirstlane_b32 s18, v1")
    a("s_lshr_b32 s3, s2, 3")
    a("s_lshr_b32 s16, s19, 1"); a("s_lshl_b32 s16, s16, 3"); a("s_and_b32 s36, s3, 7"); a("s_add_u32 s16, s16, s36")
    a("s_and_b32 s17, s19, 1"); a("s_lshl_b32 s17, s17, 2"); a("s_lshr_b32 s36, s3, 3"); a("s_add_u32 s17, s17, s36")
    a("v_and_b32 v0, 63, v0")
    a("s_and_b32 s38, s18, 3")
    a("s_and_b32 s36, s17, 3"); a("s_lshl_b32 s36, s36, 6"); a("s_lshl_b32 s37, s38, 4"); a("s_add_u32 s36, s36, s37")
    a("v_add_u32 v5, s36, v0"); a("v_lshlrev_b32 v5, 11, v5")
    a("s_and_b32 s36, s16, 7"); a("s_mul_i32 s36, s36, 48"); a("s_mul_i32 s37, s38, 12"); a("s_add_u32 s36, s36, s37")
    a("v_min_u32 v6, 11, v0"); a("v_add_u32 v6, s36, v6")
    a("v_lshrrev_b32 v7, 7, v6"); a("v_lshlrev_b32 v7, 21, v7")
    a("v_bfe_u32 v8, v6, 1, 6"); a("v_lshl_add_u32 v7, v8, 11, v7")
    a("v_and_b32 v8, 1, v6"); a("v_lshl_add_u32 v7, v8, 7, v7")
    a("s_lshl_b32 s37, s17, 8"); a("v_add_u32 v6, s37, v7")
    a("s_lshl_b32 s36, s16, 19")
    a("s_waitcnt lgkmcnt(0)")
    a("s_add_u32 s4, s20, s36"); a("s_addc_u32 s5, s21, 0"); a("s_mov_b32 s6, 524288"); a("s_mov_b32 s7, 0x20000")
    a("s_mov_b32 s8, s22"); a("s_mov_b32 s9, s23"); a("s_mov_b32 s10, 6291456"); a("s_mov_b32 s11, 0x20000")
    a("s_add_u32 s12, s32, s36"); a("s_addc_u32 s13, s33, 0"); a("s_mov_b32 s14, 524288"); a("s_mov_b32 s15, 0x20000")

    def touch(xs, ws_, dst):
        a("s_mov_b64 exec, 0xffff")
        a(f"buffer_load_dword v{dst}, v5, s[4:7], {xs} offen{pfpol}")
        a("s_mov_b64 exec, 0xfff")
        a(f"buffer_load_dword v{dst+1}, v6, s[8:11], {ws_} offen{pfpol}")
        a("s_mov_b64 exec, -1")

    a("s_cmp_ge_u32 s18, 4")
    a("s_cbranch_scc0 L_compute")

    if prio_l: a(f"s_setprio {prio_l}")
    a("v_lshrrev_b32 v2, 4, v0")
    a("v_lshrrev_b32 v1, 3, v0"); a("v_lshlrev_b32 v1, 14, v1")
    a("v_xor_b32 v3, v0, v2"); a("v_and_b32 v3, 7, v3"); a("v_lshlrev_b32 v3, 4, v3")
    a("s_lshl_b32 s36, s38, 12")
    a("v_add3_u32 v1, v1, v3, s36")
    a("v_xor_b32 v9, 64, v1")
    a("v_lshlrev_b32 v3, 2, v2"); a("s_and_b32 s36, s38, 1"); a("s_lshl_b32 s36, s36, 1"); a("v_or_b32 v3, s36, v3")
    a("v_and_b32 v4, 15, v0"); a("v_xor_b32 v3, v3, v4"); a("v_lshlrev_b32 v3, 4, v3")
    a("v_lshlrev_b32 v2, 11, v2")
    a("s_lshl_b32 s36, s38, 14"); a("s_lshl_b32 s37, s17, 8"); a("s_add_u32 s36, s36, s37")
    a("v_add3_u32 v2, v2, v3, s36")
    a("s_mov_b32 s44, 0")
    a("s_mov_b32 s45, 0")
    a("s_lshl_b32 s46, s38, 13")
    a("s_lshl_b32 s49, s38, 11"); a(f"s_add_u32 s49, s49, {WBASE}")
    a("s_mov_b32 s50, 0")
    a(f"s_mov_b32 s54, {pfd*128}"); a(f"s_mov_b32 s55, {pfd*131072}")

    def issue_x():
        for sidx in range(2):
            for e in range(4):
                a(f"s_add_u32 m0, s46, {sidx*4096 + e*1024}")
                a(f"s_add_u32 s52, s44, {sidx*2048 + e*131072}")
                a(f"buffer_load_dwordx4 v{9 if e & 1 else 1}, s[4:7], s52 offen{xpol} lds")
        a("s_add_u32 s44, s44, 128")
        a(f"s_xor_b32 s46, s46, {XSLOT}")
    def issue_w():
        a("s_add_u32 s47, s50, s49")
        for tap in range(3):
            for j in range(2):
                a(f"s_add_u32 m0, s47, {tap*8192 + j*1024}")
                a(f"s_add_u32 s52, s45, {tap*2097152 + j*8192}")
                a(f"buffer_load_dwordx4 v2, s[8:11], s52 offen{wpol} lds")
        a("s_add_u32 s45, s45, 65536")
        a(f"s_add_u32 s50, s50, {WSLOT}")
        a(f"s_cmp_eq_u32 s50, {nwslot*WSLOT}")
        a("s_cselect_b32 s50, 0, s50")
    def issue_t():
        touch("s54", "s55", 12)
        a("s_add_u32 s54, s54, 128"); a("s_add_u32 s55, s55, 131072")

    WD = nwslot - 1
    ev = [("w", 0), ("x", 0), ("w", 1), ("x", 1)] + [("w", t) for t in range(2, WD)]
    for t in range(NST):
        ev.append(("bar", t))
        if t % 2 == 0 and t >= 2 and t // 2 + 1 < 16: ev.append(("x", t // 2 + 1))
        if t + WD < NST: ev.append(("w", t + WD))
        if pfd and t % 2 == 0 and t // 2 + pfd < 16: ev.append(("t", t // 2 + pfd))
    cost = {"w": 6, "x": 8, "t": 2}
    waits = {}
    issued = []
    for e in ev:
        if e[0] == "bar":
            t = e[1]
            need = max(i for i, q in enumerate(issued) if q == ("w", t) or q == ("x", t // 2))
            waits[t] = sum(cost[q[0]] for q in issued[need + 1:])
        else: issued.append(e)
    def emit_ev(e):
        if e[0] == "bar":
            a(f"s_waitcnt vmcnt({waits[e[1]]})")
            if ldstamps and e[1] < 31: lst(32 + e[1])
            a("s_barrier")
            if ldstamps: lst(e[1])
        elif e[0] == "x":
            if "x" not in nodma or e[1] < 2: issue_x()
        elif e[0] == "w":
            if "w" not in nodma or e[1] < 4: issue_w()
        else: issue_t()
    def lst(n):
        a("s_memtime s[40:41]"); a("s_memrealtime s[42:43]"); a("s_waitcnt lgkmcnt(0)")
        a(f"v_writelane_b32 v10, s40, {n}"); a(f"v_writelane_b32 v11, s42, {n}")
    if ldstamps:
        a("v_mov_b32 v10, 0"); a("v_mov_b32 v11, 0")
        a("v_writelane_b32 v10, s60, 63"); a("v_writelane_b32 v11, s62, 63")
        for e in ev: emit_ev(e)
        a("s_cmp_eq_u32 s38, 0"); a("s_cbranch_scc0 L_end")
        a("s_lshl_b32 s36, s2, 9"); a("s_add_u32 s36, s36, 65536")
        a("v_lshl_add_u32 v1, v0, 3, s36")
        a("global_store_dwordx2 v1, v[10:11], s[34:35]")
    else:
        pro = ev[:ev.index(("bar", 0))]
        pairs = []
        for m in range(16):
            i0 = ev.index(("bar", 2 * m)); i1 = ev.index(("bar", 2 * m + 2)) if m < 15 else len(ev)
            pairs.append(ev[i0:i1])
        sig = [tuple((e[0], waits[e[1]] if e[0] == "bar" else 0) for e in p) for p in pairs]
        for e in pro: emit_ev(e)
        m = 0
        while m < 16:
            n = 1
            while m + n < 16 and sig[m + n] == sig[m]: n += 1
            if n > 2:
                a("s_mov_b32 s53, 0"); a.label(f"L_ld{m}")
                for e in pairs[m]: emit_ev(e)
                a("s_add_u32 s53, s53, 1"); a(f"s_cmp_lt_u32 s53, {n}"); a(f"s_cbranch_scc1 L_ld{m}")
            else:
                for k in range(n):
                    for e in pairs[m + k]: emit_ev(e)
            m += n
    a("s_endpgm")

    a.label("L_compute")
    if prio_c: a(f"s_setprio {prio_c}")
    a("v_lshrrev_b32 v1, 4, v0")
    a("s_lshl_b32 s36, s17, 8"); a("s_lshl_b32 s37, s38, 6"); a("s_add_u32 s36, s36, s37")
    a("v_lshlrev_b32 v2, 3, v1"); a("v_add_u32 v2, s36, v2")
    for k in range(4):
        a(f"global_load_dwordx2 v[{8+4*k}:{9+4*k}], v2, s[{24+2*k}:{25+2*k}]")
        a(f"global_load_dwordx2 v[{10+4*k}:{11+4*k}], v2, s[{24+2*k}:{25+2*k}] offset:32")
    ntouch = 0
    if first_touch and pfd:
        for m in range(0, pfd):
            a(f"s_mov_b32 s54, {m*128}"); a(f"s_mov_b32 s55, {m*131072}")
            touch("s54", "s55", T + 2 * m); ntouch += 2
    a("v_and_b32 v3, 15, v0")
    a("v_lshlrev_b32 v4, 14, v3"); a("v_add_u32 v4, s36, v4")
    a("v_and_b32 v5, 1, v1"); a("v_lshl_add_u32 v4, v5, 5, v4")
    a("v_lshrrev_b32 v5, 1, v1"); a(f"v_lshl_add_u32 v{VOUT}, v5, 4, v4")
    a("v_lshrrev_b32 v4, 1, v3"); a("v_xor_b32 v4, v4, v1"); a("v_lshlrev_b32 v4, 4, v4")
    a(f"v_lshl_add_u32 v{VX0}, v3, 7, v4"); a(f"v_xor_b32 v{VX1}, 64, v{VX0}")
    a("v_bfe_u32 v4, v0, 2, 2")
    a("v_lshl_add_u32 v5, v1, 3, v4"); a("v_lshlrev_b32 v5, 8, v5")
    a("v_and_b32 v6, 1, v1"); a("v_lshl_or_b32 v4, v4, 1, v6"); a("s_lshl_b32 s37, s38, 1"); a("v_xor_b32 v4, s37, v4")
    a("v_lshl_add_u32 v5, v4, 5, v5")
    a("v_and_b32 v4, 3, v0"); a("v_lshl_add_u32 v5, v4, 3, v5")
    a(f"v_add_u32 v{BW0}, {WBASE}, v5")
    a(f"v_mov_b32 v{VW0}, v{BW0}"); a(f"v_xor_b32 v{VW1}, 32, v{BW0}")
    for r in range(128): a(f"v_mov_b32 v{ACC+r}, 0")
    a(f"s_waitcnt vmcnt({ntouch})")
    a("s_mov_b32 s36, 0xffff0000"); a("s_mov_b32 s37, 0x3727c5ac"); a("s_mov_b32 s39, 0xbfb8aa3b")
    for r in range(8):
        dw, hi = r >> 1, r & 1
        def unpack(dst, base):
            if hi: a(f"v_and_b32 v{dst}, s36, v{base+dw}")
            else: a(f"v_lshlrev_b32 v{dst}, 16, v{base+dw}")
        def rnd(x):
            a(f"v_cvt_pk_bf16_f32 v{x}, v{x}, v{x}"); a(f"v_and_b32 v{x}, s36, v{x}")
        unpack(60, 12); unpack(61, 16); unpack(62, 8); unpack(63, 20)
        a("v_add_f32 v60, s37, v60"); rnd(60)
        a("v_sqrt_f32 v60, v60"); a("s_nop 0"); rnd(60)
        a("v_rcp_f32 v60, v60"); a("s_nop 0"); rnd(60)
        a("v_mul_f32 v60, v61, v60"); rnd(60)
        a("v_fma_f32 v63, -v62, v60, v63")
        a(f"v_mul_f32 v{SC+r}, s39, v60"); a(f"v_mul_f32 v{SH+r}, s39, v63")
    a("s_mov_b32 s50, 0"); a("s_mov_b32 s53, 0")

    def acc(s, bh, dh): return ACC + 16 * s + 8 * bh + 4 * dh
    def xread(s, bh, h): return ("X%d" % s, f"ds_read_b128 v[{XR+4*s}:{XR+4*s+3}], v{VX1 if h else VX0} offset:{s*4096 + bh*2048}")
    def wreads(W, tag):
        r = []
        for tap in (1, 2, 0):
            for dh in range(2):
                for half in range(2):
                    b = W + 8 * tap + 4 * dh + 2 * half
                    r.append((f"{tag}{tap}{dh}", f"ds_read_b64_tr_b16 v[{b}:{b+1}], v{VW1 if dh else VW0} offset:{tap*8192 + half*1024}"))
        return r

    class Q:
        def __init__(self): self.q = []; self.age = []; self.on = False
        def issue(self, tag, ins):
            self.q.append(tag); self.age.append(0)
            if self.on and (("x" in nords and tag[0] == "X") or ("w" in nords and tag[0] != "X")): return
            a(ins)
        def tick(self):
            self.age = [x + 1 for x in self.age]
        def need(self, tags):
            idx = [i for i, t in enumerate(self.q) if t in tags]
            if idx:
                m = max(idx + [i for i, x in enumerate(self.age) if x >= old])
                n = len(self.q) - 1 - m
                assert n <= 15
                a(f"s_waitcnt lgkmcnt({n})"); self.q = self.q[m + 1:]; self.age = self.age[m + 1:]
        def drain(self):
            a("s_waitcnt lgkmcnt(0)"); self.q = []; self.age = []
    q = Q()

    def groups(bh, W, tag):
        gs = []
        for o in range(8):
            g = []
            if order == "o":
                it = [(dh, tap) for dh in range(2) for tap in (1, 2, 0)]
            else:
                it = [(dh, tap) for tap in (1, 2, 0) for dh in range(2)]
            for dh, tap in it:
                s = o + tap - 1
                if 0 <= s <= 7:
                    c = acc(o, bh, dh); w = W + 8 * tap + 4 * dh
                    g.append((f"v_mfma_f32_16x16x32_bf16 v[{c}:{c+3}], v[{w}:{w+3}], v[{XR+4*s}:{XR+4*s+3}], v[{c}:{c+3}]", {f"X{s}", f"{tag}{tap}{dh}"}))
            gs.append(g)
        return gs

    a("s_barrier")
    stamp(1)
    for t, r in wreads(WA, "A")[:4]: q.issue(t, r)
    for s in range(2): q.issue(*xread(s, 0, 0))
    for t, r in wreads(WA, "A")[4:]: q.issue(t, r)
    q.drain()
    for s in range(2, 8): q.issue(*xread(s, 0, 0))
    q.drain()

    slot_adv = [f"s_add_u32 s50, s50, {WSLOT}", f"s_cmp_eq_u32 s50, {nwslot*WSLOT}", "s_cselect_b32 s50, 0, s50"]
    def bar(xtoggle):
        l = [f"v_add_u32 v{VW0}, s50, v{BW0}", f"v_xor_b32 v{VW1}, 32, v{VW0}"]
        if xtoggle: l += [f"v_xor_b32 v{VX0}, {XSLOT}, v{VX0}"]
        l += ["s_barrier"]
        return l

    def body(carry, last=False):
        def rp(bh, W, tag, nxt, wnext, pre_bar, extra, carry):
            gs = groups(bh, W, tag)
            pend = list(carry); wl = list(wnext or [])
            for o, g in enumerate(gs):
                for i, (ins, tags) in enumerate(g):
                    q.need(tags)
                    a(ins); q.tick()
                    if extra and o == 0 and i == 2:
                        for x in extra: a(x)
                    if pend and (i == 0 or (o == 0 and i == 1)):
                        q.issue(*pend.pop(0))
                    elif wl and o >= 2 and 1 <= i <= 3:
                        q.issue(*wl.pop(0))
                if o == 1 and pre_bar is not None:
                    q.drain()
                    for x in pre_bar: a(x)
                if nxt is not None and o >= 1: pend.append(xread(o - 1, nxt[0], nxt[1]))
            assert not wl
            if nxt is not None: pend.append(xread(7, nxt[0], nxt[1]))
            return pend
        c = rp(0, WA, "A", (1, 0), None, None, slot_adv, carry)
        c = rp(1, WA, "A", (0, 1), wreads(WB, "B"), bar(False), None, c)
        c = rp(0, WB, "B", (1, 1), None, None, (slot_adv + ["s_add_u32 s53, s53, 1"]) if not last else None, c)
        if not last:
            c = rp(1, WB, "B", (0, 0), wreads(WA, "A"), bar(True), None, c)
        else:
            c = rp(1, WB, "B", None, None, None, None, c)
        return c

    carry0 = [xread(6, 0, 0), xread(7, 0, 0)]
    if nords:
        for t, r in wreads(WB, "B"): q.issue(t, r)
        q.drain()
    q.on = True
    a(".p2align 3")
    a.label("L_loop")
    save = a.l; a.l = []
    q.q = []; q.age = []
    c = body(carry0); steady = list(q.q); sage = list(q.age)
    a.l = save
    q.q = list(steady); q.age = list(sage)
    n0 = len(a.l)
    c = body(carry0)
    assert q.q == steady and [x[0] for x in c] == ["X6", "X7"], (q.q, steady, c)
    a(f"v_xor_b32 v{VX1}, {XSLOT}, v{VX1}")
    a("s_cmp_lt_u32 s53, 15")
    a("s_cbranch_scc1 L_loop")
    body(carry0, last=True)
    stamp(2)

    a("s_mov_b32 s40, 0xbfb8aa3b"); a("s_mov_b32 s41, 0xbfb8aa3b")
    a("s_waitcnt vmcnt(0)")
    a("s_nop 7")
    k = 0
    for bh in range(2):
        for s in range(8):
            A = acc(s, bh, 0); P = T + 8 + 4 * (k & 3); TT = T; k += 1
            if not noepi:
                if pk:
                    for r in range(0, 8, 2): a(f"v_pk_fma_f32 v[{A+r}:{A+r+1}], v[{A+r}:{A+r+1}], v[{SC+r}:{SC+r+1}], v[{SH+r}:{SH+r+1}]")
                    for r in range(8): a(f"v_exp_f32 v{TT+r}, v{A+r}")
                    for r in range(0, 8, 2): a(f"v_pk_fma_f32 v[{TT+r}:{TT+r+1}], v[{TT+r}:{TT+r+1}], s[40:41], s[40:41]")
                    for r in range(8): a(f"v_rcp_f32 v{TT+r}, v{TT+r}")
                    for r in range(0, 8, 2): a(f"v_pk_mul_f32 v[{A+r}:{A+r+1}], v[{A+r}:{A+r+1}], v[{TT+r}:{TT+r+1}]")
                else:
                    for r in range(8): a(f"v_fma_f32 v{A+r}, v{A+r}, v{SC+r}, v{SH+r}")
                    for r in range(8): a(f"v_exp_f32 v{TT+r}, v{A+r}")
                    for r in range(8): a(f"v_fma_f32 v{TT+r}, v{TT+r}, s40, s40")
                    for r in range(8): a(f"v_rcp_f32 v{TT+r}, v{TT+r}")
                    for r in range(8): a(f"v_mul_f32 v{A+r}, v{A+r}, v{TT+r}")
            for r in range(4): a(f"v_cvt_pk_bf16_f32 v{P+r}, v{A+2*r}, v{A+2*r+1}")
            a(f"s_mov_b32 s37, {bh*262144 + (s>>1)*4096}")
            a("s_nop 0")
            a(f"v_permlane16_swap_b32 v{P}, v{P+2}")
            a(f"v_permlane16_swap_b32 v{P+1}, v{P+3}")
            a(f"buffer_store_dwordx4 v[{P}:{P+3}], v{VOUT}, s[12:15], s37 offen offset:{(s&1)*2048}{stpol}")
    stamp(3)
    if spin:
        a("s_waitcnt vmcnt(0)")
        a.label("L_spin")
        a("s_sleep 4")
        a("s_memrealtime s[44:45]"); a("s_waitcnt lgkmcnt(0)"); a("s_sub_u32 s44, s44, s59"); a(f"s_cmp_lt_u32 s44, {spin*100}"); a("s_cbranch_scc1 L_spin")
    if stamps:
        a("s_waitcnt vmcnt(0)")
        stamp(4)
        a("s_cmp_eq_u32 s18, 0"); a("s_cbranch_scc0 L_end")
        if dbgst:
            a("v_mov_b32 v1, 0")
            a("s_mov_b64 exec, 1")
            a("s_sub_u32 s36, -1, s62"); a("v_mov_b32 v4, s36"); a("global_atomic_umax v1, v4, s[34:35]")
            for j in range(5):
                a(f"v_mov_b32 v4, s{62+4*j}"); a(f"global_atomic_umax v1, v4, s[34:35] offset:{4+4*j}")
            for j in range(1, 5):
                a(f"s_sub_u32 s36, s{60+4*j}, s60"); a("v_mov_b32 v4, s36"); a(f"global_atomic_umax v1, v4, s[34:35] offset:{24+4*j}")
            for j in range(1, 5):
                a(f"s_sub_u32 s36, s{62+4*j}, s62"); a("v_mov_b32 v4, s36"); a(f"global_atomic_add v1, v4, s[34:35] offset:{40+4*j}")
            a("s_endpgm")
        a("s_lshl_b32 s36, s2, 7"); a("v_mov_b32 v1, s36")
        for j in range(5):
            for qq in range(4): a(f"v_mov_b32 v{4+qq}, s{60+4*j+qq}")
            a(f"global_store_dwordx4 v1, v[4:7], s[34:35] offset:{16*j}"); a("s_nop 2")
    a.label("L_end")
    a("s_endpgm")

    out = HEADER
    out += "; Override launch geometry by editing the next line (default: block=256,\n"
    out += "; @launch grid=(256,1,1) block=(512,1,1) lds=163840\n"
    out += '.amdgcn_target "amdgcn-amd-amdhsa--gfx950"\n.text\n'
    out += f".globl {KNAME}\n.p2align 8\n.type {KNAME},@function\n"
    out += a.text()
    out += f""".section .rodata,"a"
.p2align 6
.amdhsa_kernel {KNAME}
  .amdhsa_next_free_vgpr 256
  .amdhsa_next_free_sgpr 96
  .amdhsa_accum_offset 256
  .amdhsa_group_segment_fixed_size 0
  .amdhsa_kernarg_size 72
  .amdhsa_user_sgpr_count 2
  .amdhsa_user_sgpr_kernarg_segment_ptr 1
  .amdhsa_system_sgpr_workgroup_id_x 1
  .amdhsa_float_denorm_mode_32 3
.end_amdhsa_kernel
"""
    return out

if __name__ == "__main__":
    kw = {}
    for x in sys.argv[2:]:
        k, v = x.split("=")
        kw[k] = eval(v)
    open(sys.argv[1], "w").write(gen(**kw))
```

```python
import sys
from gen1 import Asm, HEADER, KNAME

XSLOT = 32768
WBASE = 65536
WSLOT = 24576

def gen(stamps=False, ldstamps=False, prio_c=0, prio_l=0, stpol=" sc1", xpol="", wpol="", old=10,
        spw=0, spx=0, start=1, tail=True, unroll=1, spin=0, nlastplain=0, fill=2, dry=False, NST=32, warm=0, warmd=1):
    a = Asm()
    ACC = 128
    XA, XB = 0, 32
    WR = [64, 76]
    VX = [88, 89]; VW = [90, 91, 92, 93]; BW = 94; VOUT = 95
    SC, SH = 96, 112
    PARAM = WBASE + 0 * WSLOT

    def stamp(j):
        if not stamps: return
        a("s_memtime s[40:41]"); a("s_memrealtime s[42:43]"); a("s_waitcnt lgkmcnt(0)")
        for q in range(4): a(f"s_mov_b32 s{60+4*j+q}, s{40+q}")

    a.label(KNAME)
    a("s_cmp_ge_u32 s2, 256")
    a("s_cbranch_scc1 L_end")
    stamp(0)
    if spin:
        a("s_memrealtime s[44:45]"); a("s_waitcnt lgkmcnt(0)"); a("s_mov_b32 s90, s44")
    a("s_load_dwordx4 s[20:23], s[0:1], 0")
    a("s_load_dwordx8 s[24:31], s[0:1], 16")
    a("s_load_dwordx2 s[32:33], s[0:1], 48")
    if stamps: a("s_load_dwordx2 s[34:35], s[0:1], 64")
    a("v_lshrrev_b32 v1, 6, v0")
    a("s_and_b32 s19, s2, 7")
    a("v_readfirstlane_b32 s18, v1")
    a("s_lshr_b32 s3, s2, 3")
    a("s_lshr_b32 s16, s19, 1"); a("s_lshl_b32 s16, s16, 3"); a("s_and_b32 s36, s3, 7"); a("s_add_u32 s16, s16, s36")
    a("s_and_b32 s17, s19, 1"); a("s_lshl_b32 s17, s17, 2"); a("s_lshr_b32 s36, s3, 3"); a("s_add_u32 s17, s17, s36")
    a("v_and_b32 v0, 63, v0")
    a("s_and_b32 s38, s18, 3")
    a("s_lshl_b32 s39, s16, 19")
    a("s_cmp_ge_u32 s18, 4")
    a("s_cbranch_scc0 L_compute")

    def pf_bases():
        if spw:
            a("s_and_b32 s36, s16, 7"); a("s_mul_i32 s36, s36, 12"); a("s_mul_i32 s37, s38, 3"); a("s_add_u32 s36, s36, s37")
            for k in range(3):
                a(f"s_add_u32 s37, s36, {k}"); a("s_lshr_b32 s56, s37, 5"); a("s_lshl_b32 s56, s56, 21"); a("s_and_b32 s37, s37, 31"); a("s_lshl_b32 s37, s37, 11")
                a("s_add_u32 s37, s37, s56"); a("s_lshl_b32 s56, s17, 8"); a("s_add_u32 s37, s37, s56")
                a(f"s_add_u32 s{80+2*k}, s22, s37"); a(f"s_addc_u32 s{81+2*k}, s23, 0")
        if spx:
            a("s_and_b32 s36, s17, 3"); a("s_lshl_b32 s36, s36, 6"); a("s_lshl_b32 s37, s38, 4"); a("s_add_u32 s36, s36, s37"); a("s_lshl_b32 s36, s36, 11")
            a("s_add_u32 s36, s36, s39"); a("s_add_u32 s86, s20, s36"); a("s_addc_u32 s87, s21, 0")
    def pf_w(off):
        for k in range(3):
            a(f"s_load_dword s88, s[{80+2*k}:{81+2*k}], {off}"); a(f"s_load_dword s88, s[{80+2*k}:{81+2*k}], {off + 128}")
    def pf_w_adv():
        for k in range(3):
            a(f"s_add_u32 s{80+2*k}, s{80+2*k}, 65536"); a(f"s_addc_u32 s{81+2*k}, s{81+2*k}, 0")
    def pf_x(off, half):
        for r in range(8 * half, 8 * half + 8): a(f"s_load_dword s88, s[86:87], {off + r*2048}")

    if prio_l: a(f"s_setprio {prio_l}")
    a("v_lshrrev_b32 v2, 4, v0")
    a("v_lshrrev_b32 v1, 3, v0"); a("v_lshlrev_b32 v1, 14, v1")
    a("v_xor_b32 v3, v0, v2"); a("v_and_b32 v3, 7, v3"); a("v_lshlrev_b32 v3, 4, v3")
    a("s_lshl_b32 s36, s38, 12")
    a("v_add3_u32 v1, v1, v3, s36")
    a("v_xor_b32 v9, 64, v1")
    a("v_lshlrev_b32 v3, 2, v2"); a("s_and_b32 s36, s38, 1"); a("s_lshl_b32 s36, s36, 1"); a("v_or_b32 v3, s36, v3")
    a("v_and_b32 v4, 15, v0"); a("v_xor_b32 v3, v3, v4"); a("v_lshlrev_b32 v3, 4, v3")
    a("v_lshlrev_b32 v2, 11, v2")
    a("s_lshl_b32 s36, s38, 14"); a("s_lshl_b32 s37, s17, 8"); a("s_add_u32 s36, s36, s37")
    a("v_add3_u32 v2, v2, v3, s36")
    a("s_mov_b32 s44, 0"); a("s_mov_b32 s45, 0")
    a("s_lshl_b32 s46, s38, 13")
    a("s_lshl_b32 s49, s38, 11"); a(f"s_add_u32 s49, s49, {WBASE}")
    a("s_mov_b32 s50, 0")
    a("s_mov_b32 s7, 0x20000"); a("s_mov_b32 s6, 524288"); a("s_mov_b32 s10, 6291456"); a("s_mov_b32 s11, 0x20000")
    a("s_waitcnt lgkmcnt(0)")
    a("s_mov_b32 s8, s22"); a("s_mov_b32 s9, s23")
    a("s_add_u32 s4, s20, s39"); a("s_addc_u32 s5, s21, 0")

    def issue_x(sidx):
        for e in range(4):
            a(f"s_add_u32 m0, s46, {sidx*4096 + e*1024}")
            a(f"s_add_u32 s52, s44, {sidx*2048 + e*131072}")
            a(f"buffer_load_dwordx4 v{9 if e & 1 else 1}, s[4:7], s52 offen{xpol} lds")
        if sidx:
            a("s_add_u32 s44, s44, 128"); a(f"s_xor_b32 s46, s46, {XSLOT}")
            if NST > 32: a("s_and_b32 s44, s44, 2047")
    def issue_w():
        a("s_add_u32 s47, s50, s49")
        for tap in (1, 2, 0):
            for j in range(2):
                a(f"s_add_u32 m0, s47, {tap*8192 + j*1024}")
                a(f"s_add_u32 s52, s45, {tap*2097152 + j*8192}")
                a(f"buffer_load_dwordx4 v2, s[8:11], s52 offen{wpol} lds")
        a("s_add_u32 s45, s45, 65536")
        if NST > 32: a("s_and_b32 s45, s45, 0x1fffff")
        a(f"s_add_u32 s50, s50, {WSLOT}"); a(f"s_cmp_eq_u32 s50, {4*WSLOT}"); a("s_cselect_b32 s50, 0, s50")

    after = {t: [] for t in range(-1, NST)}
    if start == 1:
        after[-1] = [("w", 0), ("x", 0, 0), ("x", 0, 1), ("w", 1)]
        after[0] = [("x", 1, 0), ("x", 1, 1), ("w", 2)]
        after[1] = [("w", 3), ("x", 2, 0)]
        after[2] = [("w", 4), ("x", 2, 1), ("w", 5)]
        t0 = 3
    elif start == 2:
        after[-1] = [("w", 0), ("x", 0, 0), ("x", 0, 1), ("w", 1)]
        after[0] = [("w", 2), ("x", 1, 0), ("x", 1, 1)]
        after[1] = [("w", 3), ("w", 4), ("x", 2, 0)]
        after[2] = [("x", 2, 1), ("w", 5)]
        t0 = 3
    else:
        after[-1] = [("w", 0), ("x", 0, 0), ("x", 0, 1), ("w", 1), ("x", 1, 0), ("x", 1, 1), ("w", 2)]
        after[0] = [("w", 3)]
        t0 = 1
    for t in range(t0, NST):
        m = (t + 3) // 2
        if m < NST // 2: after[t].append(("x", m, (t + 3) & 1))
        if t + 3 < NST: after[t].append(("w", t + 3))
    for t in range(0, NST):
        if spw and t + spw < NST: after[t].insert(0, ("pw", t + spw))
        if spx and (t + spx) // 2 < 16: after[t].insert(0, ("px", (t + spx) // 2, (t + spx) & 1))
    after[0].append(("par",))
    after[NST - 3].append(("parw",))
    cost = {"w": 6, "x": 4, "pw": 0, "px": 0, "par": 4, "parw": 0}
    waits = {}; issued = list(after[-1])
    for t in range(NST):
        need = max(i for i, q in enumerate(issued) if q == ("w", t) or (q[0] == "x" and q[1] == t // 2))
        waits[t] = sum(cost[q[0]] for q in issued[need + 1:])
        issued += after[t]
    def lst(n):
        a("s_memtime s[40:41]"); a("s_memrealtime s[42:43]"); a("s_waitcnt lgkmcnt(0)")
        a(f"v_writelane_b32 v10, s40, {n}"); a(f"v_writelane_b32 v11, s42, {n}")
    def emit(e):
        if e[0] == "x": issue_x(e[2])
        elif e[0] == "w": issue_w()
        elif e[0] == "pw": pf_w(0); pf_w_adv()
        elif e[0] == "px":
            pf_x(0, e[2])
            if e[2]: a("s_add_u32 s86, s86, 128"); a("s_addc_u32 s87, s87, 0")
        elif e[0] == "par":
            a("s_lshl_b32 s36, s17, 8"); a("v_lshl_add_u32 v12, v0, 2, s36")
            for k in range(4): a(f"global_load_dword v{16+k}, v12, s[{24+2*k}:{25+2*k}]")
        elif e[0] == "parw":
            a("s_mov_b32 s36, 0xffff0000"); a("s_mov_b32 s37, 0x3727c5ac"); a("s_mov_b32 s56, 0xbfb8aa3b")
            for hi in range(2):
                def unpack(dst, src): a(f"v_and_b32 v{dst}, s36, v{src}" if hi else f"v_lshlrev_b32 v{dst}, 16, v{src}")
                def rnd(x): a(f"v_cvt_pk_bf16_f32 v{x}, v{x}, v{x}"); a(f"v_and_b32 v{x}, s36, v{x}")
                unpack(20, 17); unpack(21, 18); unpack(22, 16); unpack(23, 19)
                a("v_add_f32 v20, s37, v20"); rnd(20)
                a("v_sqrt_f32 v20, v20"); a("s_nop 0"); rnd(20)
                a("v_rcp_f32 v20, v20"); a("s_nop 0"); rnd(20)
                a("v_mul_f32 v20, v21, v20"); rnd(20)
                a("v_fma_f32 v23, -v22, v20, v23")
                a(f"v_mul_f32 v{24+hi}, s56, v20"); a(f"v_mul_f32 v{26+hi}, s56, v23")
            a("v_lshlrev_b32 v12, 3, v0"); a(f"v_add_u32 v12, {PARAM}, v12")
            a("ds_write_b64 v12, v[24:25]"); a("ds_write_b64 v12, v[26:27] offset:512")
            a("s_waitcnt lgkmcnt(0)")
    def bar(t):
        a(f"s_waitcnt vmcnt({waits[t]})")
        if ldstamps and t < 31 and NST == 32: lst(32 + t)
        a("s_barrier")
        if ldstamps and NST == 32: lst(t)
        if ldstamps and NST > 32 and t % 2 == 0: lst(t // 2)
    first = True
    for e in after[-1]:
        emit(e)
        if first:
            first = False
            pf_bases()
            if spw: a(f"s_add_u32 s80, s80, {spw*65536}"); a("s_addc_u32 s81, s81, 0"); a(f"s_add_u32 s82, s82, {spw*65536}"); a("s_addc_u32 s83, s83, 0"); a(f"s_add_u32 s84, s84, {spw*65536}"); a("s_addc_u32 s85, s85, 0")
            if spx: a(f"s_add_u32 s86, s86, {(spx//2)*128}"); a("s_addc_u32 s87, s87, 0")
    if ldstamps:
        a("v_mov_b32 v10, 0"); a("v_mov_b32 v11, 0")
        a("v_writelane_b32 v10, s60, 63"); a("v_writelane_b32 v11, s62, 63")
        for t in range(NST):
            bar(t)
            for e in after[t]: emit(e)
        a("s_cmp_eq_u32 s38, 0"); a("s_cbranch_scc0 L_end")
        a("s_lshl_b32 s36, s2, 9"); a("s_add_u32 s36, s36, 65536")
        a("v_lshl_add_u32 v1, v0, 3, s36")
        a("global_store_dwordx2 v1, v[10:11], s[34:35]")
    else:
        def sig(t): return (waits[t], tuple((e[0],) + ((e[2],) if e[0] in ("x", "px") else ()) for e in after[t]))
        t = 0
        while t < NST:
            n = 1
            while t + 2 * n + 1 < NST and sig(t + 2 * n) == sig(t) and sig(t + 2 * n + 1) == sig(t + 1): n += 1
            if n > 2:
                a("s_mov_b32 s53, 0"); a.label(f"L_ld{t}")
                for u in (t, t + 1):
                    bar(u)
                    for e in after[u]: emit(e)
                a("s_add_u32 s53, s53, 1"); a(f"s_cmp_lt_u32 s53, {n}"); a(f"s_cbranch_scc1 L_ld{t}")
                t += 2 * n
            else:
                bar(t)
                for e in after[t]: emit(e)
                t += 1
    a("s_endpgm")

    a.label("L_compute")
    if prio_c: a(f"s_setprio {prio_c}")
    a("v_lshrrev_b32 v1, 4, v0")
    a("v_and_b32 v3, 15, v0")
    a("s_and_b32 s57, s38, 1"); a("s_lshr_b32 s58, s38, 1")
    a("s_lshl_b32 s36, s17, 8"); a("s_lshl_b32 s37, s58, 7"); a("s_add_u32 s36, s36, s37"); a("s_lshl_b32 s37, s57, 18"); a("s_add_u32 s36, s36, s37")
    a("v_lshlrev_b32 v4, 14, v3"); a("v_add_u32 v4, s36, v4")
    a("v_and_b32 v5, 1, v1"); a("v_lshl_add_u32 v4, v5, 5, v4")
    a("v_lshrrev_b32 v5, 1, v1"); a(f"v_lshl_add_u32 v{VOUT}, v5, 4, v4")
    a("v_lshrrev_b32 v4, 1, v3"); a("v_xor_b32 v4, v4, v1"); a("v_lshlrev_b32 v4, 4, v4")
    a("v_lshl_add_u32 v4, v3, 7, v4"); a("s_lshl_b32 s36, s57, 11")
    a(f"v_add_u32 v{VX[0]}, s36, v4"); a(f"v_xor_b32 v{VX[1]}, 64, v{VX[0]}")
    a("v_bfe_u32 v4, v0, 2, 2")
    a("v_lshl_add_u32 v5, v1, 3, v4"); a("v_lshlrev_b32 v5, 8, v5")
    a("v_and_b32 v6, 1, v1"); a("v_lshl_or_b32 v4, v4, 1, v6"); a("s_lshl_b32 s37, s58, 2"); a("v_xor_b32 v4, s37, v4")
    a("v_lshl_add_u32 v5, v4, 5, v5")
    a("v_and_b32 v4, 3, v0"); a("v_lshl_add_u32 v5, v4, 3, v5")
    a(f"v_add_u32 v{BW}, {WBASE}, v5")
    a(f"v_mov_b32 v{VW[0]}, v{BW}")
    for cb in (1, 2, 3): a(f"v_xor_b32 v{VW[cb]}, {32*cb}, v{BW}")
    a("s_lshl_b32 s59, s58, 8"); a(f"s_add_u32 s59, s59, {PARAM}")
    a("s_mov_b32 s14, 524288"); a("s_mov_b32 s15, 0x20000")
    a("s_waitcnt lgkmcnt(0)")
    a("s_add_u32 s12, s32, s39"); a("s_addc_u32 s13, s33, 0")
    if spw or spx:
        pf_bases()
        if spw:
            for t in range(2, spw): pf_w(t * 65536)
        if spx:
            for t in range(2, spx): pf_x((t // 2) * 128, t & 1)
    if warm:
        for r in range(8, 24): a(f"v_xor_b32 v{r}, {0x3d5a3c91 + 0x01230457 * r & 0x3fff3fff}, v{VOUT}")
        a("s_nop 1")
        for i in range(warm):
            a(f"v_mfma_f32_16x16x32_bf16 v[{ACC+4*(i//3&31)}:{ACC+4*(i//3&31)+3}], v[{8+4*(i&1)}:{11+4*(i&1)}], v[{16+4*(i>>1&1)}:{19+4*(i>>1&1)}], v[{ACC+4*(i//3&31)}:{ACC+4*(i//3&31)+3}]")
            if warmd > 1 and i < warm * 2 // 3: a(f"s_nop {min(7, (warm * 2 // 3 - i) * 8 // (warm * 2 // 3))}")
        a("s_nop 7")
    for r in range(128): a(f"v_mov_b32 v{ACC+r}, 0")
    a("s_mov_b32 s50, 0"); a("s_mov_b32 s53, 0")
    a("s_waitcnt lgkmcnt(0)")

    def acc(o, cb): return ACC + 16 * o + 4 * cb
    def xreads(h): return [(f"X{h}{s}", f"ds_read_b128 v[{(XB if h else XA)+4*s}:{(XB if h else XA)+4*s+3}], v{VX[h]} offset:{s*4096}") for s in range(8)]
    def wreads(k, cb, extra=0):
        r = []
        for tap in (1, 2, 0):
            for half in range(2):
                b = WR[k] + 4 * tap + 2 * half
                r.append((f"W{k}{tap}", f"ds_read_b64_tr_b16 v[{b}:{b+1}], v{VW[cb]} offset:{extra + tap*8192 + half*1024}"))
        return r

    class Q:
        def __init__(self): self.q = []; self.age = []
        def issue(self, tag, ins): self.q.append(tag); self.age.append(0); a(ins)
        def tick(self): self.age = [x + 1 for x in self.age]
        def need(self, tags):
            idx = [i for i, t in enumerate(self.q) if t in tags]
            if idx:
                m = max(idx + [i for i, x in enumerate(self.age) if x >= old]); n = len(self.q) - 1 - m
                assert n <= 15
                a(f"s_waitcnt lgkmcnt({n})"); self.q = self.q[m + 1:]; self.age = self.age[m + 1:]
        def drain(self):
            if self.q: a("s_waitcnt lgkmcnt(0)")
            self.q = []; self.age = []
    q = Q()

    def group(h, cb, k, reads, alu=(), filler=None):
        reads = list(reads); alu = list(alu)
        X = XB if h else XA
        for o in range(8):
            for tap in (1, 2, 0):
                s = o + tap - 1
                if not 0 <= s <= 7: continue
                c = acc(o, cb); w = WR[k] + 4 * tap
                q.need({f"X{h}{s}", f"W{k}{tap}"})
                a(f"v_mfma_f32_16x16x32_bf16 v[{c}:{c+3}], v[{w}:{w+3}], v[{X+4*s}:{X+4*s+3}], v[{c}:{c+3}]"); q.tick()
                if reads:
                    q.issue(*reads.pop(0))
                    if filler and fill > 1: filler(fill - 1)
                elif alu: a(alu.pop(0))
                elif filler: filler()
        assert not reads and not alu

    slot_adv = [f"s_add_u32 s50, s50, {WSLOT}", f"s_cmp_eq_u32 s50, {4*WSLOT}", "s_cselect_b32 s50, 0, s50"]
    def step(h, cnt=False):
        xr = xreads(1) if h == 0 else []
        group(h, 0, 0, wreads(1, 1) + xr[:8], slot_adv + (["s_add_u32 s53, s53, 1"] if cnt else []))
        group(h, 1, 1, wreads(0, 2), [f"v_add_u32 v{VW[0]}, s50, v{BW}", f"v_xor_b32 v{VW[1]}, 32, v{VW[0]}", f"v_xor_b32 v{VX[h^1]}, {XSLOT}, v{VX[h^1]}"])
        group(h, 2, 0, wreads(1, 3), [f"v_xor_b32 v{VW[2]}, 64, v{VW[0]}"])
        q.drain(); a("s_barrier")
        nx = xreads(0) if h == 1 else []
        w = wreads(0, 0)
        group(h, 3, 1, w[:2] + nx[:2] + w[2:] + nx[2:], [f"v_xor_b32 v{VW[3]}, 96, v{VW[0]}"])

    a("s_barrier")
    stamp(1)
    w = wreads(0, 0); nx = xreads(0)
    for r in w[:2] + nx[:2] + w[2:] + nx[2:]: q.issue(*r)
    a(".p2align 3")
    a.label("L_loop")
    save = a.l; a.l = []; pre = (list(q.q), list(q.age))
    step(0); step(1); st = (list(q.q), list(q.age))
    a.l = save
    assert st[0] == pre[0]
    q.q, q.age = list(st[0]), list(st[1])
    for u in range(unroll):
        step(0, cnt=(u == 0)); step(1)
    assert (q.q, q.age) == st
    nloop = (NST // 2 - 1) // unroll
    a(f"s_cmp_lt_u32 s53, {nloop}")
    a("s_cbranch_scc1 L_loop")
    for u in range(NST // 2 - 1 - nloop * unroll):
        step(0); step(1)

    def item(o, cbs, T0, pk):
        A = acc(o, cbs[0]); S = SC + 4 * cbs[0]; H = SH + 4 * cbs[0]; n = 4 * len(cbs)
        l = []
        if not pk:
            l += [f"v_fma_f32 v{A+r}, v{A+r}, v{S+r}, v{H+r}" for r in range(n)]
            l += [f"v_exp_f32 v{T0+r}, v{A+r}" for r in range(n)]
            l += [f"v_fma_f32 v{T0+r}, v{T0+r}, s46, s46" for r in range(n)]
            l += [f"v_rcp_f32 v{T0+r}, v{T0+r}" for r in range(n)]
            l += [f"v_mul_f32 v{A+r}, v{A+r}, v{T0+r}" for r in range(n)]
        else:
            l += [f"v_pk_fma_f32 v[{A+r}:{A+r+1}], v[{A+r}:{A+r+1}], v[{S+r}:{S+r+1}], v[{H+r}:{H+r+1}]" for r in range(0, n, 2)]
            l += [f"v_exp_f32 v{T0+r}, v{A+r}" for r in range(n)]
            l += [f"v_pk_fma_f32 v[{T0+r}:{T0+r+1}], v[{T0+r}:{T0+r+1}], s[46:47], s[46:47]" for r in range(0, n, 2)]
            l += [f"v_rcp_f32 v{T0+r}, v{T0+r}" for r in range(n)]
            l += [f"v_pk_mul_f32 v[{A+r}:{A+r+1}], v[{A+r}:{A+r+1}], v[{T0+r}:{T0+r+1}]" for r in range(0, n, 2)]
        for cb in cbs:
            B = acc(o, cb)
            if cb & 1: l += [f"v_cvt_pk_bf16_f32 v{B}, v{B}, v{B+1}", f"v_cvt_pk_bf16_f32 v{B+1}, v{B+2}, v{B+3}"]
            else: l += [f"v_cvt_pk_bf16_f32 v{B+3}, v{B+2}, v{B+3}", f"v_cvt_pk_bf16_f32 v{B+2}, v{B}, v{B+1}"]
        if cbs[-1] & 1:
            cp = cbs[-1] >> 1; P = acc(o, 2 * cp) + 2
            l += [f"s_mov_b32 s37, {(o>>1)*4096}", "s_nop 0", f"v_permlane16_swap_b32 v{P}, v{P+2}", f"v_permlane16_swap_b32 v{P+1}, v{P+3}",
                  f"buffer_store_dwordx4 v[{P}:{P+3}], v{VOUT}, s[12:15], s37 offen offset:{(o&1)*2048 + cp*64}@POL"]
        return l
    VP = VX[0]
    def par(i): return (f"P{i}", f"ds_read_b128 v[{(SC if i < 4 else SH)+4*(i&3)}:{(SC if i < 4 else SH)+4*(i&3)+3}], v{VP} offset:{(i&3)*64 + (i>>2)*512}")
    const = ["s_mov_b32 s46, 0xbfb8aa3b", "s_mov_b32 s47, 0xbfb8aa3b",
             f"v_mbcnt_lo_u32_b32 v{VP}, -1, 0", f"v_mbcnt_hi_u32_b32 v{VP}, -1, v{VP}", f"v_and_b32 v{VP}, 48, v{VP}", f"v_add_u32 v{VP}, s59, v{VP}"]
    allp = {f"P{i}" for i in range(8)}
    done = set()
    if not tail:
        step(0)
        group(1, 0, 0, wreads(1, 1), const); group(1, 1, 1, wreads(0, 2) + [par(i) for i in range(8)]); group(1, 2, 0, wreads(1, 3)); group(1, 3, 1, [])
        stamp(2)
        q.need(allp)
        a("s_nop 7")
    else:
        pend = [(o, cb) for cb in range(2) for o in range(8)]
        cur = []; avail = set()
        def filler(budget=fill):
            while budget > 0:
                if not cur:
                    if not pend or pend[0][1] not in avail: return
                    o, cb = pend.pop(0); done.add((o, cb))
                    cur.extend(item(o, [cb], SC + 8, False))
                c = 2 if cur[0].startswith(("v_exp", "v_rcp")) else 1
                if c > budget and budget < fill: return
                a(cur.pop(0).replace("@POL", stpol)); budget -= c
        a("s_barrier")
        group(0, 0, 0, wreads(1, 0, WSLOT) + xreads(1), const)
        group(1, 0, 1, wreads(0, 1) + [par(i) for i in (0, 4, 1, 5)])
        q.need(allp); avail.add(0)
        group(0, 1, 0, wreads(1, 1, WSLOT), filler=filler)
        group(1, 1, 1, wreads(0, 2), filler=filler)
        avail.add(1)
        group(0, 2, 0, wreads(1, 2, WSLOT), filler=filler)
        group(1, 2, 1, wreads(0, 3), filler=filler)
        group(0, 3, 0, wreads(1, 3, WSLOT), filler=filler)
        group(1, 3, 1, [], filler=filler)
        stamp(2)
        while cur: a(cur.pop(0).replace("@POL", stpol))
        for i in (2, 6, 3, 7): q.issue(*par(i))
    todo = []
    for cp in range(2):
        for o in range(8):
            cbs = [cb for cb in (2 * cp, 2 * cp + 1) if (o, cb) not in done]
            if cbs: todo.append((o, cbs))
    for i, (o, cbs) in enumerate(todo):
        if cbs[0] >= 2: q.need(allp)
        for x in item(o, cbs, XA + 8 * (i & 1), True): a(x.replace("@POL", "" if i >= len(todo) - nlastplain else stpol))
    stamp(3)
    if spin:
        a("s_waitcnt vmcnt(0)")
        a.label("L_spin")
        a("s_sleep 4")
        a("s_memrealtime s[44:45]"); a("s_waitcnt lgkmcnt(0)"); a("s_sub_u32 s44, s44, s90"); a(f"s_cmp_lt_u32 s44, {spin*100}"); a("s_cbranch_scc1 L_spin")
    if stamps:
        a("s_waitcnt vmcnt(0)")
        stamp(4)
        a("s_cmp_eq_u32 s18, 0"); a("s_cbranch_scc0 L_end")
        a("s_lshl_b32 s36, s2, 7"); a("v_mov_b32 v1, s36")
        for j in range(5):
            for qq in range(4): a(f"v_mov_b32 v{4+qq}, s{60+4*j+qq}")
            a(f"global_store_dwordx4 v1, v[4:7], s[34:35] offset:{16*j}"); a("s_nop 2")
    a.label("L_end")
    a("s_endpgm")

    out = HEADER
    out += "; Override launch geometry by editing the next line (default: block=256,\n; grid=ceil(out_elems/256), lds=0). Harness parses it; keep it on one line.\n"
    out += "; @launch grid=(256,1,1) block=(512,1,1) lds=163840\n"
    out += '.amdgcn_target "amdgcn-amd-amdhsa--gfx950"\n.text\n'
    out += f".globl {KNAME}\n.p2align 8\n.type {KNAME},@function\n"
    out += a.text()
    out += f""".section .rodata,"a"
.p2align 6
.amdhsa_kernel {KNAME}
  .amdhsa_next_free_vgpr 256
  .amdhsa_next_free_sgpr 96
  .amdhsa_accum_offset 256
  .amdhsa_group_segment_fixed_size 0
  .amdhsa_kernarg_size 72
  .amdhsa_user_sgpr_count 2
  .amdhsa_user_sgpr_kernarg_segment_ptr 1
  .amdhsa_system_sgpr_workgroup_id_x 1
  .amdhsa_float_denorm_mode_32 3
.end_amdhsa_kernel
"""
    return out

if __name__ == "__main__":
    kw = {}
    for x in sys.argv[2:]:
        k, v = x.split("=")
        kw[k] = eval(v)
    open(sys.argv[1], "w").write(gen(**kw))
```

```python
import sys
from gen1 import Asm, HEADER, KNAME

XSLOT = 32768
WBASE = 65536
WSLOT = 24576

def gen(stamps=False, ldstamps=False, prio_c=0, prio_l=0, stpol=" sc1", xpol="", wpol="", old=10,
        spw=0, spx=0, start=1, tail=True, unroll=1, spin=0, nlastplain=0, fill=2, dry=False, NST=32, warm=0, warmd=1, cpf=0):
    a = Asm()
    ACC = 128
    XA, XB = 0, 32
    WR = [64, 76]
    VX = [88, 89]; VW = [90, 91, 92, 93]; BW = 94; VOUT = 95
    SC, SH = 96, 112
    PARAM = WBASE + 0 * WSLOT

    def stamp(j):
        if not stamps: return
        a("s_memtime s[40:41]"); a("s_memrealtime s[42:43]"); a("s_waitcnt lgkmcnt(0)")
        for q in range(4): a(f"s_mov_b32 s{60+4*j+q}, s{40+q}")

    a.label(KNAME)
    a("s_cmp_ge_u32 s2, 256")
    a("s_cbranch_scc1 L_end")
    stamp(0)
    if spin:
        a("s_memrealtime s[44:45]"); a("s_waitcnt lgkmcnt(0)"); a("s_mov_b32 s90, s44")
    a("s_load_dwordx4 s[20:23], s[0:1], 0")
    a("s_load_dwordx8 s[24:31], s[0:1], 16")
    a("s_load_dwordx2 s[32:33], s[0:1], 48")
    if stamps: a("s_load_dwordx2 s[34:35], s[0:1], 64")
    a("v_lshrrev_b32 v1, 6, v0")
    a("s_and_b32 s19, s2, 7")
    a("v_readfirstlane_b32 s18, v1")
    a("s_lshr_b32 s3, s2, 3")
    a("s_lshr_b32 s16, s19, 1"); a("s_lshl_b32 s16, s16, 3"); a("s_and_b32 s36, s3, 7"); a("s_add_u32 s16, s16, s36")
    a("s_and_b32 s17, s19, 1"); a("s_lshl_b32 s17, s17, 2"); a("s_lshr_b32 s36, s3, 3"); a("s_add_u32 s17, s17, s36")
    a("v_and_b32 v0, 63, v0")
    a("s_and_b32 s38, s18, 3")
    a("s_lshl_b32 s39, s16, 19")
    a("s_cmp_ge_u32 s18, 4")
    a("s_cbranch_scc0 L_compute")

    def pf_bases():
        if spw:
            a("s_and_b32 s36, s16, 7"); a("s_mul_i32 s36, s36, 12"); a("s_mul_i32 s37, s38, 3"); a("s_add_u32 s36, s36, s37")
            for k in range(3):
                a(f"s_add_u32 s37, s36, {k}"); a("s_lshr_b32 s56, s37, 5"); a("s_lshl_b32 s56, s56, 21"); a("s_and_b32 s37, s37, 31"); a("s_lshl_b32 s37, s37, 11")
                a("s_add_u32 s37, s37, s56"); a("s_lshl_b32 s56, s17, 8"); a("s_add_u32 s37, s37, s56")
                a(f"s_add_u32 s{80+2*k}, s22, s37"); a(f"s_addc_u32 s{81+2*k}, s23, 0")
        if spx:
            a("s_and_b32 s36, s17, 3"); a("s_lshl_b32 s36, s36, 6"); a("s_lshl_b32 s37, s38, 4"); a("s_add_u32 s36, s36, s37"); a("s_lshl_b32 s36, s36, 11")
            a("s_add_u32 s36, s36, s39"); a("s_add_u32 s86, s20, s36"); a("s_addc_u32 s87, s21, 0")
    def pf_w(off):
        for k in range(3):
            a(f"s_load_dword s88, s[{80+2*k}:{81+2*k}], {off}"); a(f"s_load_dword s88, s[{80+2*k}:{81+2*k}], {off + 128}")
    def pf_w_adv():
        for k in range(3):
            a(f"s_add_u32 s{80+2*k}, s{80+2*k}, 65536"); a(f"s_addc_u32 s{81+2*k}, s{81+2*k}, 0")
    def pf_x(off, half):
        for r in range(8 * half, 8 * half + 8): a(f"s_load_dword s88, s[86:87], {off + r*2048}")

    if prio_l: a(f"s_setprio {prio_l}")
    a("v_lshrrev_b32 v2, 4, v0")
    a("v_lshrrev_b32 v1, 3, v0"); a("v_lshlrev_b32 v1, 14, v1")
    a("v_xor_b32 v3, v0, v2"); a("v_and_b32 v3, 7, v3"); a("v_lshlrev_b32 v3, 4, v3")
    a("s_lshl_b32 s36, s38, 12")
    a("v_add3_u32 v1, v1, v3, s36")
    a("v_xor_b32 v9, 64, v1")
    a("v_lshlrev_b32 v3, 2, v2"); a("s_and_b32 s36, s38, 1"); a("s_lshl_b32 s36, s36, 1"); a("v_or_b32 v3, s36, v3")
    a("v_and_b32 v4, 15, v0"); a("v_xor_b32 v3, v3, v4"); a("v_lshlrev_b32 v3, 4, v3")
    a("v_lshlrev_b32 v2, 11, v2")
    a("s_lshl_b32 s36, s38, 14"); a("s_lshl_b32 s37, s17, 8"); a("s_add_u32 s36, s36, s37")
    a("v_add3_u32 v2, v2, v3, s36")
    a("s_mov_b32 s44, 0"); a("s_mov_b32 s45, 0")
    a("s_lshl_b32 s46, s38, 13")
    a("s_lshl_b32 s49, s38, 11"); a(f"s_add_u32 s49, s49, {WBASE}")
    a("s_mov_b32 s50, 0")
    a("s_mov_b32 s7, 0x20000"); a("s_mov_b32 s6, 524288"); a("s_mov_b32 s10, 6291456"); a("s_mov_b32 s11, 0x20000")
    a("s_waitcnt lgkmcnt(0)")
    a("s_mov_b32 s8, s22"); a("s_mov_b32 s9, s23")
    a("s_add_u32 s4, s20, s39"); a("s_addc_u32 s5, s21, 0")

    def issue_x(sidx):
        for e in range(4):
            a(f"s_add_u32 m0, s46, {sidx*4096 + e*1024}")
            a(f"s_add_u32 s52, s44, {sidx*2048 + e*131072}")
            a(f"buffer_load_dwordx4 v{9 if e & 1 else 1}, s[4:7], s52 offen{xpol} lds")
        if sidx:
            a("s_add_u32 s44, s44, 128"); a(f"s_xor_b32 s46, s46, {XSLOT}")
            if NST > 32: a("s_and_b32 s44, s44, 2047")
    def issue_w():
        a("s_add_u32 s47, s50, s49")
        for tap in (1, 2, 0):
            for j in range(2):
                a(f"s_add_u32 m0, s47, {tap*8192 + j*1024}")
                a(f"s_add_u32 s52, s45, {tap*2097152 + j*8192}")
                a(f"buffer_load_dwordx4 v2, s[8:11], s52 offen{wpol} lds")
        a("s_add_u32 s45, s45, 65536")
        if NST > 32: a("s_and_b32 s45, s45, 0x1fffff")
        a(f"s_add_u32 s50, s50, {WSLOT}"); a(f"s_cmp_eq_u32 s50, {4*WSLOT}"); a("s_cselect_b32 s50, 0, s50")

    after = {t: [] for t in range(-1, NST)}
    if start == 1:
        after[-1] = [("w", 0), ("x", 0, 0), ("x", 0, 1), ("w", 1)]
        after[0] = [("x", 1, 0), ("x", 1, 1), ("w", 2)]
        after[1] = [("w", 3), ("x", 2, 0)]
        after[2] = [("w", 4), ("x", 2, 1), ("w", 5)]
        t0 = 3
    elif start == 2:
        after[-1] = [("w", 0), ("x", 0, 0), ("x", 0, 1), ("w", 1)]
        after[0] = [("w", 2), ("x", 1, 0), ("x", 1, 1)]
        after[1] = [("w", 3), ("w", 4), ("x", 2, 0)]
        after[2] = [("x", 2, 1), ("w", 5)]
        t0 = 3
    else:
        after[-1] = [("w", 0), ("x", 0, 0), ("x", 0, 1), ("w", 1), ("x", 1, 0), ("x", 1, 1), ("w", 2)]
        after[0] = [("w", 3)]
        t0 = 1
    for t in range(t0, NST):
        m = (t + 3) // 2
        if m < NST // 2: after[t].append(("x", m, (t + 3) & 1))
        if t + 3 < NST: after[t].append(("w", t + 3))
    for t in range(0, NST):
        if spw and t + spw < NST: after[t].insert(0, ("pw", t + spw))
        if spx and (t + spx) // 2 < 16: after[t].insert(0, ("px", (t + spx) // 2, (t + spx) & 1))
    after[0].append(("par",))
    after[NST - 3].append(("parw",))
    cost = {"w": 6, "x": 4, "pw": 0, "px": 0, "par": 4, "parw": 0}
    waits = {}; issued = list(after[-1])
    for t in range(NST):
        need = max(i for i, q in enumerate(issued) if q == ("w", t) or (q[0] == "x" and q[1] == t // 2))
        waits[t] = sum(cost[q[0]] for q in issued[need + 1:])
        issued += after[t]
    def lst(n):
        a("s_memtime s[40:41]"); a("s_memrealtime s[42:43]"); a("s_waitcnt lgkmcnt(0)")
        a(f"v_writelane_b32 v10, s40, {n}"); a(f"v_writelane_b32 v11, s42, {n}")
    def emit(e):
        if e[0] == "x": issue_x(e[2])
        elif e[0] == "w": issue_w()
        elif e[0] == "pw": pf_w(0); pf_w_adv()
        elif e[0] == "px":
            pf_x(0, e[2])
            if e[2]: a("s_add_u32 s86, s86, 128"); a("s_addc_u32 s87, s87, 0")
        elif e[0] == "par":
            a("s_lshl_b32 s36, s17, 8"); a("v_lshl_add_u32 v12, v0, 2, s36")
            for k in range(4): a(f"global_load_dword v{16+k}, v12, s[{24+2*k}:{25+2*k}]")
        elif e[0] == "parw":
            a("s_mov_b32 s36, 0xffff0000"); a("s_mov_b32 s37, 0x3727c5ac"); a("s_mov_b32 s56, 0xbfb8aa3b")
            for hi in range(2):
                def unpack(dst, src): a(f"v_and_b32 v{dst}, s36, v{src}" if hi else f"v_lshlrev_b32 v{dst}, 16, v{src}")
                def rnd(x): a(f"v_cvt_pk_bf16_f32 v{x}, v{x}, v{x}"); a(f"v_and_b32 v{x}, s36, v{x}")
                unpack(20, 17); unpack(21, 18); unpack(22, 16); unpack(23, 19)
                a("v_add_f32 v20, s37, v20"); rnd(20)
                a("v_sqrt_f32 v20, v20"); a("s_nop 0"); rnd(20)
                a("v_rcp_f32 v20, v20"); a("s_nop 0"); rnd(20)
                a("v_mul_f32 v20, v21, v20"); rnd(20)
                a("v_fma_f32 v23, -v22, v20, v23")
                a(f"v_mul_f32 v{24+hi}, s56, v20"); a(f"v_mul_f32 v{26+hi}, s56, v23")
            a("v_lshlrev_b32 v12, 3, v0"); a(f"v_add_u32 v12, {PARAM}, v12")
            a("ds_write_b64 v12, v[24:25]"); a("ds_write_b64 v12, v[26:27] offset:512")
            a("s_waitcnt lgkmcnt(0)")
    def bar(t):
        a(f"s_waitcnt vmcnt({waits[t]})")
        if ldstamps and t < 31 and NST == 32: lst(32 + t)
        a("s_barrier")
        if ldstamps and NST == 32: lst(t)
        if ldstamps and NST > 32 and t % 2 == 0: lst(t // 2)
    first = True
    for e in after[-1]:
        emit(e)
        if first:
            first = False
            pf_bases()
            if spw: a(f"s_add_u32 s80, s80, {spw*65536}"); a("s_addc_u32 s81, s81, 0"); a(f"s_add_u32 s82, s82, {spw*65536}"); a("s_addc_u32 s83, s83, 0"); a(f"s_add_u32 s84, s84, {spw*65536}"); a("s_addc_u32 s85, s85, 0")
            if spx: a(f"s_add_u32 s86, s86, {(spx//2)*128}"); a("s_addc_u32 s87, s87, 0")
    if ldstamps:
        a("v_mov_b32 v10, 0"); a("v_mov_b32 v11, 0")
        a("v_writelane_b32 v10, s60, 63"); a("v_writelane_b32 v11, s62, 63")
        for t in range(NST):
            bar(t)
            for e in after[t]: emit(e)
        a("s_cmp_eq_u32 s38, 0"); a("s_cbranch_scc0 L_end")
        a("s_lshl_b32 s36, s2, 9"); a("s_add_u32 s36, s36, 65536")
        a("v_lshl_add_u32 v1, v0, 3, s36")
        a("global_store_dwordx2 v1, v[10:11], s[34:35]")
    else:
        def sig(t): return (waits[t], tuple((e[0],) + ((e[2],) if e[0] in ("x", "px") else ()) for e in after[t]))
        t = 0
        while t < NST:
            n = 1
            while t + 2 * n + 1 < NST and sig(t + 2 * n) == sig(t) and sig(t + 2 * n + 1) == sig(t + 1): n += 1
            if n > 2:
                a("s_mov_b32 s53, 0"); a.label(f"L_ld{t}")
                for u in (t, t + 1):
                    bar(u)
                    for e in after[u]: emit(e)
                a("s_add_u32 s53, s53, 1"); a(f"s_cmp_lt_u32 s53, {n}"); a(f"s_cbranch_scc1 L_ld{t}")
                t += 2 * n
            else:
                bar(t)
                for e in after[t]: emit(e)
                t += 1
    a("s_endpgm")

    a.label("L_compute")
    if prio_c: a(f"s_setprio {prio_c}")
    if cpf:
        a("s_getpc_b64 s[42:43]")
        a.label("L_pc")
        a("s_lshl_b32 s36, s38, 12"); a("v_lshl_add_u32 v4, v0, 6, s36")
        a(f"s_sub_u32 s42, s42, L_pc-{KNAME}"); a("s_subb_u32 s43, s43, 0")
        a(f"v_min_u32 v4, L_end-{KNAME}, v4")
        a(f"global_load_dword v{SH+15}, v4, s[42:43]")
    a("v_lshrrev_b32 v1, 4, v0")
    a("v_and_b32 v3, 15, v0")
    a("s_and_b32 s57, s38, 1"); a("s_lshr_b32 s58, s38, 1")
    a("s_lshl_b32 s36, s17, 8"); a("s_lshl_b32 s37, s58, 7"); a("s_add_u32 s36, s36, s37"); a("s_lshl_b32 s37, s57, 18"); a("s_add_u32 s36, s36, s37")
    a("v_lshlrev_b32 v4, 14, v3"); a("v_add_u32 v4, s36, v4")
    a("v_and_b32 v5, 1, v1"); a("v_lshl_add_u32 v4, v5, 5, v4")
    a("v_lshrrev_b32 v5, 1, v1"); a(f"v_lshl_add_u32 v{VOUT}, v5, 4, v4")
    a("v_lshrrev_b32 v4, 1, v3"); a("v_xor_b32 v4, v4, v1"); a("v_lshlrev_b32 v4, 4, v4")
    a("v_lshl_add_u32 v4, v3, 7, v4"); a("s_lshl_b32 s36, s57, 11")
    a(f"v_add_u32 v{VX[0]}, s36, v4"); a(f"v_xor_b32 v{VX[1]}, 64, v{VX[0]}")
    a("v_bfe_u32 v4, v0, 2, 2")
    a("v_lshl_add_u32 v5, v1, 3, v4"); a("v_lshlrev_b32 v5, 8, v5")
    a("v_and_b32 v6, 1, v1"); a("v_lshl_or_b32 v4, v4, 1, v6"); a("s_lshl_b32 s37, s58, 2"); a("v_xor_b32 v4, s37, v4")
    a("v_lshl_add_u32 v5, v4, 5, v5")
    a("v_and_b32 v4, 3, v0"); a("v_lshl_add_u32 v5, v4, 3, v5")
    a(f"v_add_u32 v{BW}, {WBASE}, v5")
    a(f"v_mov_b32 v{VW[0]}, v{BW}")
    for cb in (1, 2, 3): a(f"v_xor_b32 v{VW[cb]}, {32*cb}, v{BW}")
    a("s_lshl_b32 s59, s58, 8"); a(f"s_add_u32 s59, s59, {PARAM}")
    a("s_mov_b32 s14, 524288"); a("s_mov_b32 s15, 0x20000")
    a("s_waitcnt lgkmcnt(0)")
    a("s_add_u32 s12, s32, s39"); a("s_addc_u32 s13, s33, 0")
    if spw or spx:
        pf_bases()
        if spw:
            for t in range(2, spw): pf_w(t * 65536)
        if spx:
            for t in range(2, spx): pf_x((t // 2) * 128, t & 1)
    if warm:
        for r in range(8, 24): a(f"v_xor_b32 v{r}, {0x3d5a3c91 + 0x01230457 * r & 0x3fff3fff}, v{VOUT}")
        a("s_nop 1")
        for i in range(warm):
            a(f"v_mfma_f32_16x16x32_bf16 v[{ACC+4*(i//3&31)}:{ACC+4*(i//3&31)+3}], v[{8+4*(i&1)}:{11+4*(i&1)}], v[{16+4*(i>>1&1)}:{19+4*(i>>1&1)}], v[{ACC+4*(i//3&31)}:{ACC+4*(i//3&31)+3}]")
            if warmd > 1 and i < warm * 2 // 3: a(f"s_nop {min(7, (warm * 2 // 3 - i) * 8 // (warm * 2 // 3))}")
        a("s_nop 7")
    for r in range(128): a(f"v_mov_b32 v{ACC+r}, 0")
    a("s_mov_b32 s50, 0"); a("s_mov_b32 s53, 0")
    a("s_waitcnt lgkmcnt(0)")

    def acc(o, cb): return ACC + 16 * o + 4 * cb
    def xreads(h): return [(f"X{h}{s}", f"ds_read_b128 v[{(XB if h else XA)+4*s}:{(XB if h else XA)+4*s+3}], v{VX[h]} offset:{s*4096}") for s in range(8)]
    def wreads(k, cb, extra=0):
        r = []
        for tap in (1, 2, 0):
            for half in range(2):
                b = WR[k] + 4 * tap + 2 * half
                r.append((f"W{k}{tap}", f"ds_read_b64_tr_b16 v[{b}:{b+1}], v{VW[cb]} offset:{extra + tap*8192 + half*1024}"))
        return r

    class Q:
        def __init__(self): self.q = []; self.age = []
        def issue(self, tag, ins): self.q.append(tag); self.age.append(0); a(ins)
        def tick(self): self.age = [x + 1 for x in self.age]
        def need(self, tags):
            idx = [i for i, t in enumerate(self.q) if t in tags]
            if idx:
                m = max(idx + [i for i, x in enumerate(self.age) if x >= old]); n = len(self.q) - 1 - m
                assert n <= 15
                a(f"s_waitcnt lgkmcnt({n})"); self.q = self.q[m + 1:]; self.age = self.age[m + 1:]
        def drain(self):
            if self.q: a("s_waitcnt lgkmcnt(0)")
            self.q = []; self.age = []
    q = Q()

    def group(h, cb, k, reads, alu=(), filler=None):
        reads = list(reads); alu = list(alu)
        X = XB if h else XA
        for o in range(8):
            for tap in (1, 2, 0):
                s = o + tap - 1
                if not 0 <= s <= 7: continue
                c = acc(o, cb); w = WR[k] + 4 * tap
                q.need({f"X{h}{s}", f"W{k}{tap}"})
                a(f"v_mfma_f32_16x16x32_bf16 v[{c}:{c+3}], v[{w}:{w+3}], v[{X+4*s}:{X+4*s+3}], v[{c}:{c+3}]"); q.tick()
                if reads:
                    q.issue(*reads.pop(0))
                    if filler and fill > 1: filler(fill - 1)
                elif alu: a(alu.pop(0))
                elif filler: filler()
        assert not reads and not alu

    slot_adv = [f"s_add_u32 s50, s50, {WSLOT}", f"s_cmp_eq_u32 s50, {4*WSLOT}", "s_cselect_b32 s50, 0, s50"]
    def step(h, cnt=False):
        xr = xreads(1) if h == 0 else []
        group(h, 0, 0, wreads(1, 1) + xr[:8], slot_adv + (["s_add_u32 s53, s53, 1"] if cnt else []))
        group(h, 1, 1, wreads(0, 2), [f"v_add_u32 v{VW[0]}, s50, v{BW}", f"v_xor_b32 v{VW[1]}, 32, v{VW[0]}", f"v_xor_b32 v{VX[h^1]}, {XSLOT}, v{VX[h^1]}"])
        group(h, 2, 0, wreads(1, 3), [f"v_xor_b32 v{VW[2]}, 64, v{VW[0]}"])
        q.drain(); a("s_barrier")
        nx = xreads(0) if h == 1 else []
        w = wreads(0, 0)
        group(h, 3, 1, w[:2] + nx[:2] + w[2:] + nx[2:], [f"v_xor_b32 v{VW[3]}, 96, v{VW[0]}"])

    a("s_barrier")
    stamp(1)
    w = wreads(0, 0); nx = xreads(0)
    for r in w[:2] + nx[:2] + w[2:] + nx[2:]: q.issue(*r)
    a(".p2align 3")
    a.label("L_loop")
    save = a.l; a.l = []; pre = (list(q.q), list(q.age))
    step(0); step(1); st = (list(q.q), list(q.age))
    a.l = save
    assert st[0] == pre[0]
    q.q, q.age = list(st[0]), list(st[1])
    for u in range(unroll):
        step(0, cnt=(u == 0)); step(1)
    assert (q.q, q.age) == st
    nloop = (NST // 2 - 1) // unroll
    a(f"s_cmp_lt_u32 s53, {nloop}")
    a("s_cbranch_scc1 L_loop")
    for u in range(NST // 2 - 1 - nloop * unroll):
        step(0); step(1)

    def item(o, cbs, T0, pk):
        A = acc(o, cbs[0]); S = SC + 4 * cbs[0]; H = SH + 4 * cbs[0]; n = 4 * len(cbs)
        l = []
        if not pk:
            l += [f"v_fma_f32 v{A+r}, v{A+r}, v{S+r}, v{H+r}" for r in range(n)]
            l += [f"v_exp_f32 v{T0+r}, v{A+r}" for r in range(n)]
            l += [f"v_fma_f32 v{T0+r}, v{T0+r}, s46, s46" for r in range(n)]
            l += [f"v_rcp_f32 v{T0+r}, v{T0+r}" for r in range(n)]
            l += [f"v_mul_f32 v{A+r}, v{A+r}, v{T0+r}" for r in range(n)]
        else:
            l += [f"v_pk_fma_f32 v[{A+r}:{A+r+1}], v[{A+r}:{A+r+1}], v[{S+r}:{S+r+1}], v[{H+r}:{H+r+1}]" for r in range(0, n, 2)]
            l += [f"v_exp_f32 v{T0+r}, v{A+r}" for r in range(n)]
            l += [f"v_pk_fma_f32 v[{T0+r}:{T0+r+1}], v[{T0+r}:{T0+r+1}], s[46:47], s[46:47]" for r in range(0, n, 2)]
            l += [f"v_rcp_f32 v{T0+r}, v{T0+r}" for r in range(n)]
            l += [f"v_pk_mul_f32 v[{A+r}:{A+r+1}], v[{A+r}:{A+r+1}], v[{T0+r}:{T0+r+1}]" for r in range(0, n, 2)]
        for cb in cbs:
            B = acc(o, cb)
            if cb & 1: l += [f"v_cvt_pk_bf16_f32 v{B}, v{B}, v{B+1}", f"v_cvt_pk_bf16_f32 v{B+1}, v{B+2}, v{B+3}"]
            else: l += [f"v_cvt_pk_bf16_f32 v{B+3}, v{B+2}, v{B+3}", f"v_cvt_pk_bf16_f32 v{B+2}, v{B}, v{B+1}"]
        if cbs[-1] & 1:
            cp = cbs[-1] >> 1; P = acc(o, 2 * cp) + 2
            l += [f"s_mov_b32 s37, {(o>>1)*4096}", "s_nop 0", f"v_permlane16_swap_b32 v{P}, v{P+2}", f"v_permlane16_swap_b32 v{P+1}, v{P+3}",
                  f"buffer_store_dwordx4 v[{P}:{P+3}], v{VOUT}, s[12:15], s37 offen offset:{(o&1)*2048 + cp*64}@POL"]
        return l
    VP = VX[0]
    def par(i): return (f"P{i}", f"ds_read_b128 v[{(SC if i < 4 else SH)+4*(i&3)}:{(SC if i < 4 else SH)+4*(i&3)+3}], v{VP} offset:{(i&3)*64 + (i>>2)*512}")
    const = ["s_waitcnt vmcnt(0)", "s_mov_b32 s46, 0xbfb8aa3b", "s_mov_b32 s47, 0xbfb8aa3b",
             f"v_mbcnt_lo_u32_b32 v{VP}, -1, 0", f"v_mbcnt_hi_u32_b32 v{VP}, -1, v{VP}", f"v_and_b32 v{VP}, 48, v{VP}", f"v_add_u32 v{VP}, s59, v{VP}"]
    allp = {f"P{i}" for i in range(8)}
    done = set()
    if not tail:
        step(0)
        group(1, 0, 0, wreads(1, 1), const); group(1, 1, 1, wreads(0, 2) + [par(i) for i in range(8)]); group(1, 2, 0, wreads(1, 3)); group(1, 3, 1, [])
        stamp(2)
        q.need(allp)
        a("s_nop 7")
    else:
        pend = [(o, cb) for cb in range(2) for o in range(8)]
        cur = []; avail = set()
        def filler(budget=fill):
            while budget > 0:
                if not cur:
                    if not pend or pend[0][1] not in avail: return
                    o, cb = pend.pop(0); done.add((o, cb))
                    cur.extend(item(o, [cb], SC + 8, False))
                c = 2 if cur[0].startswith(("v_exp", "v_rcp")) else 1
                if c > budget and budget < fill: return
                a(cur.pop(0).replace("@POL", stpol)); budget -= c
        a("s_barrier")
        group(0, 0, 0, wreads(1, 0, WSLOT) + xreads(1), const)
        group(1, 0, 1, wreads(0, 1) + [par(i) for i in (0, 4, 1, 5)])
        q.need(allp); avail.add(0)
        group(0, 1, 0, wreads(1, 1, WSLOT), filler=filler)
        group(1, 1, 1, wreads(0, 2), filler=filler)
        avail.add(1)
        group(0, 2, 0, wreads(1, 2, WSLOT), filler=filler)
        group(1, 2, 1, wreads(0, 3), filler=filler)
        group(0, 3, 0, wreads(1, 3, WSLOT), filler=filler)
        group(1, 3, 1, [], filler=filler)
        stamp(2)
        while cur: a(cur.pop(0).replace("@POL", stpol))
        for i in (2, 6, 3, 7): q.issue(*par(i))
    todo = []
    for cp in range(2):
        for o in range(8):
            cbs = [cb for cb in (2 * cp, 2 * cp + 1) if (o, cb) not in done]
            if cbs: todo.append((o, cbs))
    for i, (o, cbs) in enumerate(todo):
        if cbs[0] >= 2: q.need(allp)
        for x in item(o, cbs, XA + 8 * (i & 1), True): a(x.replace("@POL", "" if i >= len(todo) - nlastplain else stpol))
    stamp(3)
    if spin:
        a("s_waitcnt vmcnt(0)")
        a.label("L_spin")
        a("s_sleep 4")
        a("s_memrealtime s[44:45]"); a("s_waitcnt lgkmcnt(0)"); a("s_sub_u32 s44, s44, s90"); a(f"s_cmp_lt_u32 s44, {spin*100}"); a("s_cbranch_scc1 L_spin")
    if stamps:
        a("s_waitcnt vmcnt(0)")
        stamp(4)
        a("s_cmp_eq_u32 s18, 0"); a("s_cbranch_scc0 L_end")
        a("s_lshl_b32 s36, s2, 7"); a("v_mov_b32 v1, s36")
        for j in range(5):
            for qq in range(4): a(f"v_mov_b32 v{4+qq}, s{60+4*j+qq}")
            a(f"global_store_dwordx4 v1, v[4:7], s[34:35] offset:{16*j}"); a("s_nop 2")
    a.label("L_end")
    a("s_endpgm")

    out = HEADER
    out += "; Override launch geometry by editing the next line (default: block=256,\n; grid=ceil(out_elems/256), lds=0). Harness parses it; keep it on one line.\n"
    out += "; @launch grid=(256,1,1) block=(512,1,1) lds=163840\n"
    out += '.amdgcn_target "amdgcn-amd-amdhsa--gfx950"\n.text\n'
    out += f".globl {KNAME}\n.p2align 8\n.type {KNAME},@function\n"
    out += a.text()
    out += f""".section .rodata,"a"
.p2align 6
.amdhsa_kernel {KNAME}
  .amdhsa_next_free_vgpr 256
  .amdhsa_next_free_sgpr 96
  .amdhsa_accum_offset 256
  .amdhsa_group_segment_fixed_size 0
  .amdhsa_kernarg_size 72
  .amdhsa_user_sgpr_count 2
  .amdhsa_user_sgpr_kernarg_segment_ptr 1
  .amdhsa_system_sgpr_workgroup_id_x 1
  .amdhsa_float_denorm_mode_32 3
.end_amdhsa_kernel
"""
    return out

if __name__ == "__main__":
    kw = {}
    for x in sys.argv[2:]:
        k, v = x.split("=")
        kw[k] = eval(v)
    open(sys.argv[1], "w").write(gen(**kw))
```

```python
import sys
from gen1 import Asm, HEADER, KNAME

XSLOT = 32768
WBASE = 65536
WSLOT = 24576

def gen(stamps=False, ldstamps=False, prio_c=0, prio_l=0, stpol=" sc1", xpol="", wpol="", old=10,
        spw=0, spx=0, start=1, tail=True, unroll=1, spin=0, nlastplain=0, fill=2, dry=False, NST=32, warm=0, warmd=1, cpf=0, pst=False, zmfma=False, spinref=0):
    a = Asm()
    ACC = 128
    XA, XB = 0, 32
    WR = [64, 76]
    VX = [88, 89]; VW = [90, 91, 92, 93]; BW = 94; VOUT = 95
    SC, SH = 96, 112
    PARAM = WBASE + 0 * WSLOT

    def stamp(j):
        if not stamps: return
        a("s_memtime s[40:41]"); a("s_memrealtime s[42:43]"); a("s_waitcnt lgkmcnt(0)")
        for q in range(4): a(f"s_mov_b32 s{60+4*j+q}, s{40+q}")

    a.label(KNAME)
    a("s_cmp_ge_u32 s2, 256")
    a("s_cbranch_scc1 L_end")
    if cpf == 2:
        a("s_getpc_b64 s[42:43]")
        a("v_lshlrev_b32 v4, 5, v0")
        a(f"v_min_u32 v4, L_end-{KNAME}-16, v4")
        a(f"global_load_dword v{SH+15}, v4, s[42:43]")
    stamp(0)
    def spinmark(j):
        if spin and spinref == j:
            a("s_memrealtime s[44:45]"); a("s_waitcnt lgkmcnt(0)"); a("s_mov_b32 s90, s44")
    spinmark(0)
    a("s_load_dwordx4 s[20:23], s[0:1], 0")
    a("s_load_dwordx8 s[24:31], s[0:1], 16")
    a("s_load_dwordx2 s[32:33], s[0:1], 48")
    if stamps: a("s_load_dwordx2 s[34:35], s[0:1], 64")
    a("v_lshrrev_b32 v1, 6, v0")
    a("s_and_b32 s19, s2, 7")
    a("v_readfirstlane_b32 s18, v1")
    a("s_lshr_b32 s3, s2, 3")
    a("s_lshr_b32 s16, s19, 1"); a("s_lshl_b32 s16, s16, 3"); a("s_and_b32 s36, s3, 7"); a("s_add_u32 s16, s16, s36")
    a("s_and_b32 s17, s19, 1"); a("s_lshl_b32 s17, s17, 2"); a("s_lshr_b32 s36, s3, 3"); a("s_add_u32 s17, s17, s36")
    a("v_and_b32 v0, 63, v0")
    a("s_and_b32 s38, s18, 3")
    a("s_lshl_b32 s39, s16, 19")
    a("s_cmp_ge_u32 s18, 4")
    a("s_cbranch_scc0 L_compute")

    def pf_bases():
        if spw:
            a("s_and_b32 s36, s16, 7"); a("s_mul_i32 s36, s36, 12"); a("s_mul_i32 s37, s38, 3"); a("s_add_u32 s36, s36, s37")
            for k in range(3):
                a(f"s_add_u32 s37, s36, {k}"); a("s_lshr_b32 s56, s37, 5"); a("s_lshl_b32 s56, s56, 21"); a("s_and_b32 s37, s37, 31"); a("s_lshl_b32 s37, s37, 11")
                a("s_add_u32 s37, s37, s56"); a("s_lshl_b32 s56, s17, 8"); a("s_add_u32 s37, s37, s56")
                a(f"s_add_u32 s{80+2*k}, s22, s37"); a(f"s_addc_u32 s{81+2*k}, s23, 0")
        if spx:
            a("s_and_b32 s36, s17, 3"); a("s_lshl_b32 s36, s36, 6"); a("s_lshl_b32 s37, s38, 4"); a("s_add_u32 s36, s36, s37"); a("s_lshl_b32 s36, s36, 11")
            a("s_add_u32 s36, s36, s39"); a("s_add_u32 s86, s20, s36"); a("s_addc_u32 s87, s21, 0")
    def pf_w(off):
        for k in range(3):
            a(f"s_load_dword s88, s[{80+2*k}:{81+2*k}], {off}"); a(f"s_load_dword s88, s[{80+2*k}:{81+2*k}], {off + 128}")
    def pf_w_adv():
        for k in range(3):
            a(f"s_add_u32 s{80+2*k}, s{80+2*k}, 65536"); a(f"s_addc_u32 s{81+2*k}, s{81+2*k}, 0")
    def pf_x(off, half):
        for r in range(8 * half, 8 * half + 8): a(f"s_load_dword s88, s[86:87], {off + r*2048}")

    if prio_l: a(f"s_setprio {prio_l}")
    a("v_lshrrev_b32 v2, 4, v0")
    a("v_lshrrev_b32 v1, 3, v0"); a("v_lshlrev_b32 v1, 14, v1")
    a("v_xor_b32 v3, v0, v2"); a("v_and_b32 v3, 7, v3"); a("v_lshlrev_b32 v3, 4, v3")
    a("s_lshl_b32 s36, s38, 12")
    a("v_add3_u32 v1, v1, v3, s36")
    a("v_xor_b32 v9, 64, v1")
    a("v_lshlrev_b32 v3, 2, v2"); a("s_and_b32 s36, s38, 1"); a("s_lshl_b32 s36, s36, 1"); a("v_or_b32 v3, s36, v3")
    a("v_and_b32 v4, 15, v0"); a("v_xor_b32 v3, v3, v4"); a("v_lshlrev_b32 v3, 4, v3")
    a("v_lshlrev_b32 v2, 11, v2")
    a("s_lshl_b32 s36, s38, 14"); a("s_lshl_b32 s37, s17, 8"); a("s_add_u32 s36, s36, s37")
    a("v_add3_u32 v2, v2, v3, s36")
    a("s_mov_b32 s44, 0"); a("s_mov_b32 s45, 0")
    a("s_lshl_b32 s46, s38, 13")
    a("s_lshl_b32 s49, s38, 11"); a(f"s_add_u32 s49, s49, {WBASE}")
    a("s_mov_b32 s50, 0")
    a("s_mov_b32 s7, 0x20000"); a("s_mov_b32 s6, 524288"); a("s_mov_b32 s10, 6291456"); a("s_mov_b32 s11, 0x20000")
    a("s_waitcnt lgkmcnt(0)")
    if pst: a("s_memtime s[92:93]"); a("s_waitcnt lgkmcnt(0)"); a("s_mov_b32 s91, s92")
    a("s_mov_b32 s8, s22"); a("s_mov_b32 s9, s23")
    a("s_add_u32 s4, s20, s39"); a("s_addc_u32 s5, s21, 0")

    def issue_x(sidx):
        for e in range(4):
            a(f"s_add_u32 m0, s46, {sidx*4096 + e*1024}")
            a(f"s_add_u32 s52, s44, {sidx*2048 + e*131072}")
            a(f"buffer_load_dwordx4 v{9 if e & 1 else 1}, s[4:7], s52 offen{xpol} lds")
        if sidx:
            a("s_add_u32 s44, s44, 128"); a(f"s_xor_b32 s46, s46, {XSLOT}")
            if NST > 32: a("s_and_b32 s44, s44, 2047")
    def issue_w():
        a("s_add_u32 s47, s50, s49")
        for tap in (1, 2, 0):
            for j in range(2):
                a(f"s_add_u32 m0, s47, {tap*8192 + j*1024}")
                a(f"s_add_u32 s52, s45, {tap*2097152 + j*8192}")
                a(f"buffer_load_dwordx4 v2, s[8:11], s52 offen{wpol} lds")
        a("s_add_u32 s45, s45, 65536")
        if NST > 32: a("s_and_b32 s45, s45, 0x1fffff")
        a(f"s_add_u32 s50, s50, {WSLOT}"); a(f"s_cmp_eq_u32 s50, {4*WSLOT}"); a("s_cselect_b32 s50, 0, s50")

    after = {t: [] for t in range(-1, NST)}
    if start == 1:
        after[-1] = [("w", 0), ("x", 0, 0), ("x", 0, 1), ("w", 1)]
        after[0] = [("x", 1, 0), ("x", 1, 1), ("w", 2)]
        after[1] = [("w", 3), ("x", 2, 0)]
        after[2] = [("w", 4), ("x", 2, 1), ("w", 5)]
        t0 = 3
    elif start == 2:
        after[-1] = [("w", 0), ("x", 0, 0), ("x", 0, 1), ("w", 1)]
        after[0] = [("w", 2), ("x", 1, 0), ("x", 1, 1)]
        after[1] = [("w", 3), ("w", 4), ("x", 2, 0)]
        after[2] = [("x", 2, 1), ("w", 5)]
        t0 = 3
    else:
        after[-1] = [("w", 0), ("x", 0, 0), ("x", 0, 1), ("w", 1), ("x", 1, 0), ("x", 1, 1), ("w", 2)]
        after[0] = [("w", 3)]
        t0 = 1
    for t in range(t0, NST):
        m = (t + 3) // 2
        if m < NST // 2: after[t].append(("x", m, (t + 3) & 1))
        if t + 3 < NST: after[t].append(("w", t + 3))
    for t in range(0, NST):
        if spw and t + spw < NST: after[t].insert(0, ("pw", t + spw))
        if spx and (t + spx) // 2 < 16: after[t].insert(0, ("px", (t + spx) // 2, (t + spx) & 1))
    after[0].append(("par",))
    after[NST - 3].append(("parw",))
    cost = {"w": 6, "x": 4, "pw": 0, "px": 0, "par": 4, "parw": 0}
    waits = {}; issued = list(after[-1])
    for t in range(NST):
        need = max(i for i, q in enumerate(issued) if q == ("w", t) or (q[0] == "x" and q[1] == t // 2))
        waits[t] = sum(cost[q[0]] for q in issued[need + 1:])
        issued += after[t]
    def lst(n):
        a("s_memtime s[40:41]"); a("s_memrealtime s[42:43]"); a("s_waitcnt lgkmcnt(0)")
        a(f"v_writelane_b32 v10, s40, {n}"); a(f"v_writelane_b32 v11, s42, {n}")
    def emit(e):
        if e[0] == "x": issue_x(e[2])
        elif e[0] == "w": issue_w()
        elif e[0] == "pw": pf_w(0); pf_w_adv()
        elif e[0] == "px":
            pf_x(0, e[2])
            if e[2]: a("s_add_u32 s86, s86, 128"); a("s_addc_u32 s87, s87, 0")
        elif e[0] == "par":
            a("s_lshl_b32 s36, s17, 8"); a("v_lshl_add_u32 v12, v0, 2, s36")
            for k in range(4): a(f"global_load_dword v{16+k}, v12, s[{24+2*k}:{25+2*k}]")
        elif e[0] == "parw":
            a("s_mov_b32 s36, 0xffff0000"); a("s_mov_b32 s37, 0x3727c5ac"); a("s_mov_b32 s56, 0xbfb8aa3b")
            for hi in range(2):
                def unpack(dst, src): a(f"v_and_b32 v{dst}, s36, v{src}" if hi else f"v_lshlrev_b32 v{dst}, 16, v{src}")
                def rnd(x): a(f"v_cvt_pk_bf16_f32 v{x}, v{x}, v{x}"); a(f"v_and_b32 v{x}, s36, v{x}")
                unpack(20, 17); unpack(21, 18); unpack(22, 16); unpack(23, 19)
                a("v_add_f32 v20, s37, v20"); rnd(20)
                a("v_sqrt_f32 v20, v20"); a("s_nop 0"); rnd(20)
                a("v_rcp_f32 v20, v20"); a("s_nop 0"); rnd(20)
                a("v_mul_f32 v20, v21, v20"); rnd(20)
                a("v_fma_f32 v23, -v22, v20, v23")
                a(f"v_mul_f32 v{24+hi}, s56, v20"); a(f"v_mul_f32 v{26+hi}, s56, v23")
            a("v_lshlrev_b32 v12, 3, v0"); a(f"v_add_u32 v12, {PARAM}, v12")
            a("ds_write_b64 v12, v[24:25]"); a("ds_write_b64 v12, v[26:27] offset:512")
            a("s_waitcnt lgkmcnt(0)")
    def bar(t):
        a(f"s_waitcnt vmcnt({waits[t]})")
        if ldstamps and t < 31 and NST == 32: lst(32 + t)
        a("s_barrier")
        if ldstamps and NST == 32: lst(t)
        if ldstamps and NST > 32 and t % 2 == 0: lst(t // 2)
    first = True
    for e in after[-1]:
        emit(e)
        if first:
            first = False
            pf_bases()
            if spw: a(f"s_add_u32 s80, s80, {spw*65536}"); a("s_addc_u32 s81, s81, 0"); a(f"s_add_u32 s82, s82, {spw*65536}"); a("s_addc_u32 s83, s83, 0"); a(f"s_add_u32 s84, s84, {spw*65536}"); a("s_addc_u32 s85, s85, 0")
            if spx: a(f"s_add_u32 s86, s86, {(spx//2)*128}"); a("s_addc_u32 s87, s87, 0")
    if pst:
        a("s_memtime s[92:93]"); a("s_waitcnt lgkmcnt(0)"); a("s_mov_b32 s94, s92")
        a(f"s_waitcnt vmcnt({waits[0]})")
        a("s_memtime s[92:93]"); a("s_waitcnt lgkmcnt(0)"); a("s_mov_b32 s95, s92")
    if ldstamps:
        a("v_mov_b32 v10, 0"); a("v_mov_b32 v11, 0")
        a("v_writelane_b32 v10, s60, 63"); a("v_writelane_b32 v11, s62, 63")
        for t in range(NST):
            bar(t)
            for e in after[t]: emit(e)
        a("s_cmp_eq_u32 s38, 0"); a("s_cbranch_scc0 L_end")
        a("s_lshl_b32 s36, s2, 9"); a("s_add_u32 s36, s36, 65536")
        a("v_lshl_add_u32 v1, v0, 3, s36")
        a("global_store_dwordx2 v1, v[10:11], s[34:35]")
    else:
        def sig(t): return (waits[t], tuple((e[0],) + ((e[2],) if e[0] in ("x", "px") else ()) for e in after[t]))
        t = 0
        while t < NST:
            n = 1
            while t + 2 * n + 1 < NST and sig(t + 2 * n) == sig(t) and sig(t + 2 * n + 1) == sig(t + 1): n += 1
            if n > 2:
                a("s_mov_b32 s53, 0"); a.label(f"L_ld{t}")
                for u in (t, t + 1):
                    bar(u)
                    for e in after[u]: emit(e)
                a("s_add_u32 s53, s53, 1"); a(f"s_cmp_lt_u32 s53, {n}"); a(f"s_cbranch_scc1 L_ld{t}")
                t += 2 * n
            else:
                bar(t)
                for e in after[t]: emit(e)
                t += 1
    if pst:
        a("s_cmp_eq_u32 s38, 0"); a("s_cbranch_scc0 L_end")
        a("s_lshl_b32 s36, s2, 7"); a("v_mov_b32 v1, s36")
        a("s_sub_u32 s91, s91, s60"); a("s_sub_u32 s94, s94, s60"); a("s_sub_u32 s95, s95, s60")
        a("v_mov_b32 v4, s91"); a("v_mov_b32 v5, s94"); a("v_mov_b32 v6, s95"); a("v_mov_b32 v7, 0")
        a("global_store_dwordx4 v1, v[4:7], s[34:35] offset:96")
    a("s_endpgm")

    a.label("L_compute")
    if prio_c: a(f"s_setprio {prio_c}")
    if cpf == 1:
        a("s_getpc_b64 s[42:43]")
        a.label("L_pc")
        a("s_lshl_b32 s36, s38, 12"); a("v_lshl_add_u32 v4, v0, 6, s36")
        a(f"s_sub_u32 s42, s42, L_pc-{KNAME}"); a("s_subb_u32 s43, s43, 0")
        a(f"v_min_u32 v4, L_end-{KNAME}, v4")
        a(f"global_load_dword v{SH+15}, v4, s[42:43]")
    a("v_lshrrev_b32 v1, 4, v0")
    a("v_and_b32 v3, 15, v0")
    a("s_and_b32 s57, s38, 1"); a("s_lshr_b32 s58, s38, 1")
    a("s_lshl_b32 s36, s17, 8"); a("s_lshl_b32 s37, s58, 7"); a("s_add_u32 s36, s36, s37"); a("s_lshl_b32 s37, s57, 18"); a("s_add_u32 s36, s36, s37")
    a("v_lshlrev_b32 v4, 14, v3"); a("v_add_u32 v4, s36, v4")
    a("v_and_b32 v5, 1, v1"); a("v_lshl_add_u32 v4, v5, 5, v4")
    a("v_lshrrev_b32 v5, 1, v1"); a(f"v_lshl_add_u32 v{VOUT}, v5, 4, v4")
    a("v_lshrrev_b32 v4, 1, v3"); a("v_xor_b32 v4, v4, v1"); a("v_lshlrev_b32 v4, 4, v4")
    a("v_lshl_add_u32 v4, v3, 7, v4"); a("s_lshl_b32 s36, s57, 11")
    a(f"v_add_u32 v{VX[0]}, s36, v4"); a(f"v_xor_b32 v{VX[1]}, 64, v{VX[0]}")
    a("v_bfe_u32 v4, v0, 2, 2")
    a("v_lshl_add_u32 v5, v1, 3, v4"); a("v_lshlrev_b32 v5, 8, v5")
    a("v_and_b32 v6, 1, v1"); a("v_lshl_or_b32 v4, v4, 1, v6"); a("s_lshl_b32 s37, s58, 2"); a("v_xor_b32 v4, s37, v4")
    a("v_lshl_add_u32 v5, v4, 5, v5")
    a("v_and_b32 v4, 3, v0"); a("v_lshl_add_u32 v5, v4, 3, v5")
    a(f"v_add_u32 v{BW}, {WBASE}, v5")
    a(f"v_mov_b32 v{VW[0]}, v{BW}")
    for cb in (1, 2, 3): a(f"v_xor_b32 v{VW[cb]}, {32*cb}, v{BW}")
    a("s_lshl_b32 s59, s58, 8"); a(f"s_add_u32 s59, s59, {PARAM}")
    a("s_mov_b32 s14, 524288"); a("s_mov_b32 s15, 0x20000")
    a("s_waitcnt lgkmcnt(0)")
    a("s_add_u32 s12, s32, s39"); a("s_addc_u32 s13, s33, 0")
    if spw or spx:
        pf_bases()
        if spw:
            for t in range(2, spw): pf_w(t * 65536)
        if spx:
            for t in range(2, spx): pf_x((t // 2) * 128, t & 1)
    if warm:
        for r in range(8, 24): a(f"v_xor_b32 v{r}, {0x3d5a3c91 + 0x01230457 * r & 0x3fff3fff}, v{VOUT}")
        a("s_nop 1")
        for i in range(warm):
            a(f"v_mfma_f32_16x16x32_bf16 v[{ACC+4*(i//3&31)}:{ACC+4*(i//3&31)+3}], v[{8+4*(i&1)}:{11+4*(i&1)}], v[{16+4*(i>>1&1)}:{19+4*(i>>1&1)}], v[{ACC+4*(i//3&31)}:{ACC+4*(i//3&31)+3}]")
            if warmd > 1 and i < warm * 2 // 3: a(f"s_nop {min(7, (warm * 2 // 3 - i) * 8 // (warm * 2 // 3))}")
        a("s_nop 7")
    if zmfma:
        for r in range(8, 12): a(f"v_mov_b32 v{r}, 0")
        a("s_nop 1")
        for r in range(8): a(f"v_mfma_f32_32x32x16_bf16 v[{ACC+16*r}:{ACC+16*r+15}], v[8:11], v[8:11], 0")
    else:
        for r in range(128): a(f"v_mov_b32 v{ACC+r}, 0")
    a("s_mov_b32 s50, 0"); a("s_mov_b32 s53, 0")
    a("s_waitcnt lgkmcnt(0)")

    def acc(o, cb): return ACC + 16 * o + 4 * cb
    def xreads(h): return [(f"X{h}{s}", f"ds_read_b128 v[{(XB if h else XA)+4*s}:{(XB if h else XA)+4*s+3}], v{VX[h]} offset:{s*4096}") for s in range(8)]
    def wreads(k, cb, extra=0):
        r = []
        for tap in (1, 2, 0):
            for half in range(2):
                b = WR[k] + 4 * tap + 2 * half
                r.append((f"W{k}{tap}", f"ds_read_b64_tr_b16 v[{b}:{b+1}], v{VW[cb]} offset:{extra + tap*8192 + half*1024}"))
        return r

    class Q:
        def __init__(self): self.q = []; self.age = []
        def issue(self, tag, ins): self.q.append(tag); self.age.append(0); a(ins)
        def tick(self): self.age = [x + 1 for x in self.age]
        def need(self, tags):
            idx = [i for i, t in enumerate(self.q) if t in tags]
            if idx:
                m = max(idx + [i for i, x in enumerate(self.age) if x >= old]); n = len(self.q) - 1 - m
                assert n <= 15
                a(f"s_waitcnt lgkmcnt({n})"); self.q = self.q[m + 1:]; self.age = self.age[m + 1:]
        def drain(self):
            if self.q: a("s_waitcnt lgkmcnt(0)")
            self.q = []; self.age = []
    q = Q()

    def group(h, cb, k, reads, alu=(), filler=None):
        reads = list(reads); alu = list(alu)
        X = XB if h else XA
        for o in range(8):
            for tap in (1, 2, 0):
                s = o + tap - 1
                if not 0 <= s <= 7: continue
                c = acc(o, cb); w = WR[k] + 4 * tap
                q.need({f"X{h}{s}", f"W{k}{tap}"})
                a(f"v_mfma_f32_16x16x32_bf16 v[{c}:{c+3}], v[{w}:{w+3}], v[{X+4*s}:{X+4*s+3}], v[{c}:{c+3}]"); q.tick()
                if reads:
                    q.issue(*reads.pop(0))
                    if filler and fill > 1: filler(fill - 1)
                elif alu: a(alu.pop(0))
                elif filler: filler()
        assert not reads and not alu

    slot_adv = [f"s_add_u32 s50, s50, {WSLOT}", f"s_cmp_eq_u32 s50, {4*WSLOT}", "s_cselect_b32 s50, 0, s50"]
    def step(h, cnt=False):
        xr = xreads(1) if h == 0 else []
        group(h, 0, 0, wreads(1, 1) + xr[:8], slot_adv + (["s_add_u32 s53, s53, 1"] if cnt else []))
        group(h, 1, 1, wreads(0, 2), [f"v_add_u32 v{VW[0]}, s50, v{BW}", f"v_xor_b32 v{VW[1]}, 32, v{VW[0]}", f"v_xor_b32 v{VX[h^1]}, {XSLOT}, v{VX[h^1]}"])
        group(h, 2, 0, wreads(1, 3), [f"v_xor_b32 v{VW[2]}, 64, v{VW[0]}"])
        q.drain(); a("s_barrier")
        nx = xreads(0) if h == 1 else []
        w = wreads(0, 0)
        group(h, 3, 1, w[:2] + nx[:2] + w[2:] + nx[2:], [f"v_xor_b32 v{VW[3]}, 96, v{VW[0]}"])

    if pst: a("s_memtime s[92:93]"); a("s_waitcnt lgkmcnt(0)"); a("s_sub_u32 s91, s92, s60")
    a("s_barrier")
    stamp(1); spinmark(1)
    w = wreads(0, 0); nx = xreads(0)
    for r in w[:2] + nx[:2] + w[2:] + nx[2:]: q.issue(*r)
    a(".p2align 3")
    a.label("L_loop")
    save = a.l; a.l = []; pre = (list(q.q), list(q.age))
    step(0); step(1); st = (list(q.q), list(q.age))
    a.l = save
    assert st[0] == pre[0]
    q.q, q.age = list(st[0]), list(st[1])
    for u in range(unroll):
        step(0, cnt=(u == 0)); step(1)
    assert (q.q, q.age) == st
    nloop = (NST // 2 - 1) // unroll
    a(f"s_cmp_lt_u32 s53, {nloop}")
    a("s_cbranch_scc1 L_loop")
    for u in range(NST // 2 - 1 - nloop * unroll):
        step(0); step(1)

    def item(o, cbs, T0, pk):
        A = acc(o, cbs[0]); S = SC + 4 * cbs[0]; H = SH + 4 * cbs[0]; n = 4 * len(cbs)
        l = []
        if not pk:
            l += [f"v_fma_f32 v{A+r}, v{A+r}, v{S+r}, v{H+r}" for r in range(n)]
            l += [f"v_exp_f32 v{T0+r}, v{A+r}" for r in range(n)]
            l += [f"v_fma_f32 v{T0+r}, v{T0+r}, s46, s46" for r in range(n)]
            l += [f"v_rcp_f32 v{T0+r}, v{T0+r}" for r in range(n)]
            l += [f"v_mul_f32 v{A+r}, v{A+r}, v{T0+r}" for r in range(n)]
        else:
            l += [f"v_pk_fma_f32 v[{A+r}:{A+r+1}], v[{A+r}:{A+r+1}], v[{S+r}:{S+r+1}], v[{H+r}:{H+r+1}]" for r in range(0, n, 2)]
            l += [f"v_exp_f32 v{T0+r}, v{A+r}" for r in range(n)]
            l += [f"v_pk_fma_f32 v[{T0+r}:{T0+r+1}], v[{T0+r}:{T0+r+1}], s[46:47], s[46:47]" for r in range(0, n, 2)]
            l += [f"v_rcp_f32 v{T0+r}, v{T0+r}" for r in range(n)]
            l += [f"v_pk_mul_f32 v[{A+r}:{A+r+1}], v[{A+r}:{A+r+1}], v[{T0+r}:{T0+r+1}]" for r in range(0, n, 2)]
        for cb in cbs:
            B = acc(o, cb)
            if cb & 1: l += [f"v_cvt_pk_bf16_f32 v{B}, v{B}, v{B+1}", f"v_cvt_pk_bf16_f32 v{B+1}, v{B+2}, v{B+3}"]
            else: l += [f"v_cvt_pk_bf16_f32 v{B+3}, v{B+2}, v{B+3}", f"v_cvt_pk_bf16_f32 v{B+2}, v{B}, v{B+1}"]
        if cbs[-1] & 1:
            cp = cbs[-1] >> 1; P = acc(o, 2 * cp) + 2
            l += [f"s_mov_b32 s37, {(o>>1)*4096}", "s_nop 0", f"v_permlane16_swap_b32 v{P}, v{P+2}", f"v_permlane16_swap_b32 v{P+1}, v{P+3}",
                  f"buffer_store_dwordx4 v[{P}:{P+3}], v{VOUT}, s[12:15], s37 offen offset:{(o&1)*2048 + cp*64}@POL"]
        return l
    VP = VX[0]
    def par(i): return (f"P{i}", f"ds_read_b128 v[{(SC if i < 4 else SH)+4*(i&3)}:{(SC if i < 4 else SH)+4*(i&3)+3}], v{VP} offset:{(i&3)*64 + (i>>2)*512}")
    const = ["s_waitcnt vmcnt(0)", "s_mov_b32 s46, 0xbfb8aa3b", "s_mov_b32 s47, 0xbfb8aa3b",
             f"v_mbcnt_lo_u32_b32 v{VP}, -1, 0", f"v_mbcnt_hi_u32_b32 v{VP}, -1, v{VP}", f"v_and_b32 v{VP}, 48, v{VP}", f"v_add_u32 v{VP}, s59, v{VP}"]
    allp = {f"P{i}" for i in range(8)}
    done = set()
    if not tail:
        step(0)
        group(1, 0, 0, wreads(1, 1), const); group(1, 1, 1, wreads(0, 2) + [par(i) for i in range(8)]); group(1, 2, 0, wreads(1, 3)); group(1, 3, 1, [])
        stamp(2)
        q.need(allp)
        a("s_nop 7")
    else:
        pend = [(o, cb) for cb in range(2) for o in range(8)]
        cur = []; avail = set()
        def filler(budget=fill):
            while budget > 0:
                if not cur:
                    if not pend or pend[0][1] not in avail: return
                    o, cb = pend.pop(0); done.add((o, cb))
                    cur.extend(item(o, [cb], SC + 8, False))
                c = 2 if cur[0].startswith(("v_exp", "v_rcp")) else 1
                if c > budget and budget < fill: return
                a(cur.pop(0).replace("@POL", stpol)); budget -= c
        a("s_barrier")
        group(0, 0, 0, wreads(1, 0, WSLOT) + xreads(1), const)
        group(1, 0, 1, wreads(0, 1) + [par(i) for i in (0, 4, 1, 5)])
        q.need(allp); avail.add(0)
        group(0, 1, 0, wreads(1, 1, WSLOT), filler=filler)
        group(1, 1, 1, wreads(0, 2), filler=filler)
        avail.add(1)
        group(0, 2, 0, wreads(1, 2, WSLOT), filler=filler)
        group(1, 2, 1, wreads(0, 3), filler=filler)
        group(0, 3, 0, wreads(1, 3, WSLOT), filler=filler)
        group(1, 3, 1, [], filler=filler)
        stamp(2); spinmark(2)
        while cur: a(cur.pop(0).replace("@POL", stpol))
        for i in (2, 6, 3, 7): q.issue(*par(i))
    todo = []
    for cp in range(2):
        for o in range(8):
            cbs = [cb for cb in (2 * cp, 2 * cp + 1) if (o, cb) not in done]
            if cbs: todo.append((o, cbs))
    for i, (o, cbs) in enumerate(todo):
        if cbs[0] >= 2: q.need(allp)
        for x in item(o, cbs, XA + 8 * (i & 1), True): a(x.replace("@POL", "" if i >= len(todo) - nlastplain else stpol))
    stamp(3)
    if spin:
        a("s_waitcnt vmcnt(0)")
        a.label("L_spin")
        a("s_sleep 4")
        a("s_memrealtime s[44:45]"); a("s_waitcnt lgkmcnt(0)"); a("s_sub_u32 s44, s44, s90"); a(f"s_cmp_lt_u32 s44, {spin*100}"); a("s_cbranch_scc1 L_spin")
    if stamps:
        a("s_waitcnt vmcnt(0)")
        stamp(4)
        a("s_cmp_eq_u32 s18, 0"); a("s_cbranch_scc0 L_end")
        a("s_lshl_b32 s36, s2, 7"); a("v_mov_b32 v1, s36")
        if pst: a("v_mov_b32 v4, s91"); a("global_store_dword v1, v4, s[34:35] offset:112")
        for j in range(5):
            for qq in range(4): a(f"v_mov_b32 v{4+qq}, s{60+4*j+qq}")
            a(f"global_store_dwordx4 v1, v[4:7], s[34:35] offset:{16*j}"); a("s_nop 2")
    a.label("L_end")
    a("s_endpgm")

    out = HEADER
    out += "; Override launch geometry by editing the next line (default: block=256,\n; grid=ceil(out_elems/256), lds=0). Harness parses it; keep it on one line.\n"
    out += "; @launch grid=(256,1,1) block=(512,1,1) lds=163840\n"
    out += '.amdgcn_target "amdgcn-amd-amdhsa--gfx950"\n.text\n'
    out += f".globl {KNAME}\n.p2align 8\n.type {KNAME},@function\n"
    out += a.text()
    out += f""".section .rodata,"a"
.p2align 6
.amdhsa_kernel {KNAME}
  .amdhsa_next_free_vgpr 256
  .amdhsa_next_free_sgpr 96
  .amdhsa_accum_offset 256
  .amdhsa_group_segment_fixed_size 0
  .amdhsa_kernarg_size 72
  .amdhsa_user_sgpr_count 2
  .amdhsa_user_sgpr_kernarg_segment_ptr 1
  .amdhsa_system_sgpr_workgroup_id_x 1
  .amdhsa_float_denorm_mode_32 3
.end_amdhsa_kernel
"""
    return out

if __name__ == "__main__":
    kw = {}
    for x in sys.argv[2:]:
        k, v = x.split("=")
        kw[k] = eval(v)
    open(sys.argv[1], "w").write(gen(**kw))
```

```python
import sys
from gen1 import Asm, HEADER, KNAME

XSLOT = 32768
WBASE = 65536
WSLOT = 24576
NST = 32

def gen(stamps=False, stpol=" sc1", old=10, start=2, tail=2, spin=0, spinref=0, fill=2, pst=0, cpf=True, fill2=None, x15early=True, spread=False, tlb=0, otouch=False, tsh=13):
    a = Asm()
    ACC = 128
    XA, XB = 0, 32
    WR = [64, 76]
    VX = [88, 89]; VW = [90, 91, 92, 93]; BW = 94; VOUT = 95
    SC, SH = 96, 112
    if fill2 is None: fill2 = fill

    def stamp(j):
        if stamps:
            a("s_memtime s[40:41]"); a("s_memrealtime s[42:43]"); a("s_waitcnt lgkmcnt(0)")
            for q in range(4): a(f"s_mov_b32 s{60+4*j+q}, s{40+q}")
        if spin and spinref == j:
            a("s_memrealtime s[44:45]"); a("s_waitcnt lgkmcnt(0)"); a("s_mov_b32 s90, s44")
    def pstamp(r):
        a("s_memtime s[92:93]"); a("s_waitcnt lgkmcnt(0)"); a(f"s_sub_u32 s{r}, s92, s60")

    a.label(KNAME)
    a("s_load_dwordx4 s[20:23], s[0:1], 0")
    a("s_cmp_ge_u32 s2, 256")
    a("s_cbranch_scc1 L_end")
    a("s_getpc_b64 s[30:31]")
    a.label("L_pc")
    if cpf:
        a("v_lshlrev_b32 v4, 5, v0")
        a("v_min_u32 v4, L_end-L_pc, v4")
        a(f"global_load_dword v{SH+15}, v4, s[30:31]")
    stamp(0)
    a("v_readfirstlane_b32 s18, v0")
    a("s_bfe_u32 s16, s2, 0x50001")
    a("s_lshr_b32 s17, s2, 6"); a("s_and_b32 s3, s2, 1"); a("s_lshl1_add_u32 s17, s17, s3")
    a("s_lshl_b32 s39, s16, 19")
    a("s_lshl_b32 s17, s17, 8")
    a("s_bfe_u32 s38, s18, 0x20006")
    a("v_and_b32 v0, 63, v0")
    a("s_bitcmp1_b32 s18, 8")
    a("s_cbranch_scc0 L_compute")

    a("v_lshrrev_b32 v8, 4, v0")
    a("v_lshrrev_b32 v1, 3, v0"); a("v_lshlrev_b32 v1, 14, v1")
    a("v_xor_b32 v3, v0, v8"); a("v_and_b32 v3, 7, v3"); a("v_lshl_add_u32 v1, v3, 4, v1")
    a("s_lshl_b32 s46, s38, 12")
    a("v_add_u32 v1, s46, v1")
    a("v_xor_b32 v2, 64, v1"); a("v_add_u32 v3, 2*130048, v1"); a("v_add_u32 v4, 3*130048, v2"); a("v_add_u32 v2, 130048, v2")
    a("s_and_b32 s36, s38, 1"); a("s_lshl_b32 s36, s36, 1"); a("v_lshl_or_b32 v5, v8, 2, s36")
    a("v_and_b32 v6, 15, v0"); a("v_xor_b32 v5, v5, v6"); a("v_lshlrev_b32 v5, 4, v5")
    a("v_lshl_add_u32 v5, v8, 11, v5")
    a("s_lshl2_add_u32 s36, s46, s17")
    a("v_add_u32 v5, s36, v5")
    a("v_add_u32 v6, 7168, v5")
    a("s_lshr_b32 s49, s46, 1"); a("s_bitset1_b32 s49, 16")
    a("s_lshl_b32 s46, s46, 1")
    a("s_mov_b32 s44, 0"); a("s_movk_i32 s48, 0x1000"); a("s_movk_i32 s51, 0x800"); a("s_movk_i32 s52, 0x80")
    a("s_mov_b32 s54, 0"); a("s_mov_b32 s55, 0x200000"); a("s_lshl_b32 s56, s55, 1"); a("s_lshr_b32 s57, s55, 5")
    a("s_mov_b32 s47, s49"); a(f"s_add_u32 s50, s49, {4*WSLOT}")
    a("s_mov_b32 s7, 0x20000"); a("s_mov_b32 s11, s7"); a("s_lshl_b32 s6, s57, 3"); a("s_add_u32 s10, s55, s56")
    a("s_add_u32 s36, s30, L_go-L_pc"); a("s_addc_u32 s37, s31, 0")
    if tlb >= 2:
        a("s_lshl_b32 s24, s38, 21"); a("s_cmp_eq_u32 s38, 3"); a("s_cselect_b32 s24, s39, s24")
        a("v_mov_b32 v7, s24")
    a("s_waitcnt lgkmcnt(0)")
    if tlb >= 2:
        a("s_cselect_b64 s[24:25], s[20:21], s[22:23]")
        a("global_load_dword v9, v7, s[24:25]")
    a("s_mov_b64 s[8:9], s[22:23]")
    a.label("L_iw")
    a("s_add_u32 m0, s47, 8192"); a(f"s_add_u32 s58, s47, {WSLOT}")
    a("buffer_load_dwordx4 v5, s[8:11], s55 offen lds"); a("buffer_load_dwordx4 v6, s[8:11], s55 offen offset:1024 lds")
    a("s_addk_i32 m0, 8192"); a("s_add_u32 s55, s55, s57")
    a("buffer_load_dwordx4 v5, s[8:11], s56 offen lds"); a("buffer_load_dwordx4 v6, s[8:11], s56 offen offset:1024 lds")
    a("s_mov_b32 m0, s47"); a("s_add_u32 s56, s56, s57")
    a("buffer_load_dwordx4 v5, s[8:11], s54 offen lds"); a("buffer_load_dwordx4 v6, s[8:11], s54 offen offset:1024 lds")
    a("s_add_u32 s54, s54, s57"); a("s_cmp_eq_u32 s58, s50"); a("s_cselect_b32 s47, s49, s58")
    a("s_setpc_b64 s[36:37]")
    a.label("L_ix")
    a("s_mov_b32 m0, s46"); a("s_xor_b32 s46, s46, s48")
    for e in range(4): a(f"buffer_load_dwordx4 v{1+e}, s[4:7], s44 offen{f' offset:{1024*e}' if e else ''} lds")
    a("s_xor_b32 s48, s48, 0x8000"); a("s_add_u32 s44, s44, s51"); a("s_sub_u32 s51, s52, s51")
    a("s_setpc_b64 s[36:37]")
    a.label("L_go")

    after = {t: [] for t in range(-1, NST)}
    if start == 2:
        after[-1] = [("w", 0), ("x", 0, 0), ("x", 0, 1), ("w", 1)]
        after[0] = [("w", 2), ("x", 1, 0), ("x", 1, 1)]
        after[1] = [("w", 3), ("w", 4), ("x", 2, 0)]
        after[2] = [("x", 2, 1), ("w", 5)]
    elif start == 3:
        after[-1] = [("w", 0), ("x", 0, 0), ("x", 0, 1), ("w", 1)]
        after[0] = [("w", 2), ("x", 1, 0), ("x", 1, 1)]
        after[1] = [("w", 3), ("x", 2, 0)]
        after[2] = [("w", 4), ("x", 2, 1), ("w", 5)]
    for t in range(3, NST):
        m = (t + 3) // 2
        if m < 16: after[t].append(("x", m, (t + 3) & 1))
        if t + 3 < NST: after[t].append(("w", t + 3))
    if tail == 2 and x15early:
        after[28].remove(("x", 15, 1)); after[27].insert(1, ("x", 15, 1))
    after[2].append(("par",))
    after[26 if tail == 2 else 29].append(("parw",))
    cost = {"w": 6, "x": 4, "par": 4, "parw": (2 if tail == 2 else 0) + int(otouch)}
    waits = {}; issued = list(after[-1])
    for t in range(NST):
        need = max(i for i, q in enumerate(issued) if q == ("w", t) or (q[0] == "x" and q[1] == t // 2) or (q[0] == "parw" and t >= 28))
        waits[t] = sum(cost[q[0]] for q in issued[need + 1:])
        if 3 <= t <= 27: waits[t] = min(waits[t], 16)
        issued += after[t]
    PARAM = WBASE
    def emit(e):
        if e[0] == "x": a("s_call_b64 s[36:37], L_ix")
        elif e[0] == "w": a("s_call_b64 s[36:37], L_iw")
        elif e[0] == "par":
            a("s_load_dwordx8 s[24:31], s[0:1], 16"); a("s_load_dwordx2 s[34:35], s[0:1], 64")
            a("v_lshl_add_u32 v12, v0, 2, s17")
            a("s_waitcnt lgkmcnt(0)")
            for k in range(4): a(f"global_load_dword v{16+k}, v12, s[{24+2*k}:{25+2*k}]")
        elif e[0] == "parw":
            if otouch:
                a("s_load_dwordx2 s[32:33], s[0:1], 48"); a("v_mov_b32 v13, s39"); a("s_waitcnt lgkmcnt(0)")
                a("global_load_dword v14, v13, s[32:33]")
            a("s_mov_b32 s24, 0xffff0000"); a("s_mov_b32 s25, 0x3727c5ac"); a("s_mov_b32 s26, 0xbfb8aa3b")
            for hi in range(2):
                def unpack(dst, src): a(f"v_and_b32 v{dst}, s24, v{src}" if hi else f"v_lshlrev_b32 v{dst}, 16, v{src}")
                def rnd(x): a(f"v_cvt_pk_bf16_f32 v{x}, v{x}, v{x}"); a(f"v_and_b32 v{x}, s24, v{x}")
                unpack(20, 17); unpack(21, 18); unpack(22, 16); unpack(23, 19)
                a("v_add_f32 v20, s25, v20"); rnd(20)
                a("v_sqrt_f32 v20, v20"); a("s_nop 0"); rnd(20)
                a("v_rcp_f32 v20, v20"); a("s_nop 0"); rnd(20)
                a("v_mul_f32 v20, v21, v20"); rnd(20)
                a("v_fma_f32 v23, -v22, v20, v23")
                a(f"v_mul_f32 v{24+hi}, s26, v20"); a(f"v_mul_f32 v{26+hi}, s26, v23")
            if tail == 2:
                a("s_lshl_b32 s27, s2, 10"); a(f"s_add_u32 s27, s27, {WSOFF}"); a("v_lshl_add_u32 v12, v0, 3, s27")
                a("global_store_dwordx2 v12, v[24:25], s[34:35]"); a("global_store_dwordx2 v12, v[26:27], s[34:35] offset:512")
            else:
                a("v_lshlrev_b32 v12, 3, v0"); a(f"v_add_u32 v12, {PARAM}, v12")
                a("ds_write_b64 v12, v[24:25]"); a("ds_write_b64 v12, v[26:27] offset:512")
                a("s_waitcnt lgkmcnt(0)")
    WSOFF = 1 << 20
    def bar(t):
        a(f"s_waitcnt vmcnt({waits[t]})"); a("s_barrier")
    for i, e in enumerate(after[-1]):
        if i: emit(e)
        if i == 0: a("s_add_u32 s4, s20, s39"); a("s_addc_u32 s5, s21, 0")
        if pst == 2 and i < 3: pstamp((91, 94, 95)[i])
    if pst == 1:
        pstamp(91); pstamp(94); a(f"s_waitcnt vmcnt({waits[0]})"); pstamp(95)
    def sig(t): return (waits[t], tuple(e[0] for e in after[t]))
    t = 0
    while t < NST:
        n = 1
        while t + n < NST and sig(t + n) == sig(t): n += 1
        if n > 2:
            a("s_mov_b32 s53, 0"); a.label(f"L_ld{t}")
            bar(t)
            for e in after[t]: emit(e)
            a("s_add_u32 s53, s53, 1"); a(f"s_cmp_lt_u32 s53, {n}"); a(f"s_cbranch_scc1 L_ld{t}")
            t += n
        else:
            bar(t)
            for e in after[t]: emit(e)
            t += 1
    if pst:
        a("s_cmp_eq_u32 s38, 0"); a("s_cbranch_scc0 L_end")
        a("s_lshl_b32 s36, s2, 7"); a("v_mov_b32 v1, s36")
        a("v_mov_b32 v4, s91"); a("v_mov_b32 v5, s94"); a("v_mov_b32 v6, s95"); a("v_mov_b32 v7, 0")
        a("global_store_dwordx4 v1, v[4:7], s[34:35] offset:96")
    a("s_endpgm")

    a.label("L_compute")
    a("s_load_dwordx2 s[32:33], s[0:1], 48")
    a("s_load_dwordx2 s[34:35], s[0:1], 64")
    if tlb in (1, 3):
        a("s_lshl_b32 s36, s38, 21"); a("s_cmp_eq_u32 s38, 3"); a("s_cselect_b32 s36, s39, s36"); a("v_mov_b32 v4, s36")
        a("s_waitcnt lgkmcnt(0)")
        a("s_cselect_b32 s24, s20, s22"); a("s_cselect_b32 s25, s21, s23")
        a(f"global_load_dword v{SH+14}, v4, s[24:25]")
    a("v_lshrrev_b32 v1, 4, v0")
    a("v_and_b32 v3, 15, v0")
    a("s_and_b32 s57, s38, 1"); a("s_lshr_b32 s58, s38, 1")
    for r in range(8, 12): a(f"v_mov_b32 v{r}, 0")
    a("s_lshl_b32 s37, s58, 7"); a("s_add_u32 s36, s17, s37"); a("s_lshl_b32 s37, s57, 18"); a("s_add_u32 s36, s36, s37")
    for r in range(8): a(f"v_mfma_f32_32x32x16_bf16 v[{ACC+16*r}:{ACC+16*r+15}], v[8:11], v[8:11], 0")
    a("v_lshlrev_b32 v4, 14, v3"); a("v_add_u32 v4, s36, v4")
    a("v_and_b32 v5, 1, v1"); a("v_lshl_add_u32 v4, v5, 5, v4")
    a("v_lshrrev_b32 v5, 1, v1"); a(f"v_lshl_add_u32 v{VOUT}, v5, 4, v4")
    a("v_lshrrev_b32 v4, 1, v3"); a("v_xor_b32 v4, v4, v1"); a("v_lshlrev_b32 v4, 4, v4")
    a("v_lshl_add_u32 v4, v3, 7, v4"); a("s_lshl_b32 s36, s57, 11")
    a(f"v_add_u32 v{VX[0]}, s36, v4"); a(f"v_xor_b32 v{VX[1]}, 64, v{VX[0]}")
    a("v_bfe_u32 v4, v0, 2, 2")
    a("v_lshl_add_u32 v5, v1, 3, v4"); a("v_lshlrev_b32 v5, 8, v5")
    a("v_and_b32 v6, 1, v1"); a("v_lshl_or_b32 v4, v4, 1, v6"); a("s_lshl_b32 s37, s58, 2"); a("v_xor_b32 v4, s37, v4")
    a("v_lshl_add_u32 v5, v4, 5, v5")
    a("v_and_b32 v4, 3, v0"); a("v_lshl_add_u32 v5, v4, 3, v5")
    a(f"v_add_u32 v{BW}, {WBASE}, v5")
    a(f"v_mov_b32 v{VW[0]}, v{BW}")
    for cb in (1, 2, 3): a(f"v_xor_b32 v{VW[cb]}, {32*cb}, v{BW}")
    a("s_lshl_b32 s59, s58, 8")
    if tail == 2: a("s_lshl_b32 s37, s2, 10"); a("s_add_u32 s59, s59, s37"); a(f"s_add_u32 s59, s59, {WSOFF}")
    else: a(f"s_add_u32 s59, s59, {PARAM}")
    a("s_mov_b32 s14, 524288"); a("s_mov_b32 s15, 0x20000")
    a("s_mov_b32 s50, 0"); a("s_mov_b32 s53, 0")
    a("s_mov_b32 s46, 0xbfb8aa3b"); a("s_mov_b32 s47, 0xbfb8aa3b")
    a("s_waitcnt lgkmcnt(0)")
    a("s_add_u32 s12, s32, s39"); a("s_addc_u32 s13, s33, 0")

    def acc(o, cb): return ACC + 16 * o + 4 * cb
    def xreads(h, extra=0): return [(f"X{h}{s}", f"ds_read_b128 v[{(XB if h else XA)+4*s}:{(XB if h else XA)+4*s+3}], v{VX[h]} offset:{extra + s*4096}") for s in range(8)]
    def wreads(k, vaddr, extra=0):
        r = []
        for tap in (1, 2, 0):
            for half in range(2):
                b = WR[k] + 4 * tap + 2 * half
                r.append((f"W{k}{tap}", f"ds_read_b64_tr_b16 v[{b}:{b+1}], v{vaddr} offset:{extra + tap*8192 + half*1024}"))
        return r

    class Q:
        def __init__(self): self.q = []; self.age = []
        def issue(self, tag, ins): self.q.append(tag); self.age.append(0); a(ins)
        def tick(self): self.age = [x + 1 for x in self.age]
        def need(self, tags):
            idx = [i for i, t in enumerate(self.q) if t in tags]
            if idx:
                m = max(idx + [i for i, x in enumerate(self.age) if x >= old]); n = len(self.q) - 1 - m
                assert n <= 15
                a(f"s_waitcnt lgkmcnt({n})"); self.q = self.q[m + 1:]; self.age = self.age[m + 1:]
        def drain(self):
            if self.q: a("s_waitcnt lgkmcnt(0)")
            self.q = []; self.age = []
    q = Q()

    def group(h, cb, k, reads, alu=(), filler=None, fl=0):
        reads = list(reads); alu = list(alu)
        X = XB if h else XA
        gap = 0
        for o in range(8):
            for tap in ((0, 1, 2) if o % 2 == 0 else (2, 1, 0)):
                s = o + tap - 1
                if not 0 <= s <= 7: continue
                c = acc(o, cb); w = WR[k] + 4 * tap
                q.need({f"X{h}{s}", f"W{k}{tap}"})
                a(f"v_mfma_f32_16x16x32_bf16 v[{c}:{c+3}], v[{w}:{w+3}], v[{X+4*s}:{X+4*s+3}], v[{c}:{c+3}]"); q.tick()
                gap += 1
                if reads and (not filler or not spread or gap % 2 == 1):
                    q.issue(*reads.pop(0))
                    if filler and fl > 1: filler(fl - 1, fl)
                elif alu: a(alu.pop(0))
                elif filler: filler(fl, fl)
        assert not reads and not alu

    slot_adv = [f"s_add_u32 s50, s50, {WSLOT}", f"s_cmp_eq_u32 s50, {4*WSLOT}", "s_cselect_b32 s50, 0, s50"]
    def step(h, cnt=None):
        xr = xreads(1) if h == 0 else []
        group(h, 0, 0, wreads(1, VW[1]) + xr, slot_adv)
        group(h, 1, 1, wreads(0, VW[2]), [f"v_add_u32 v{VW[0]}, s50, v{BW}", f"v_xor_b32 v{VW[1]}, 32, v{VW[0]}", f"v_xor_b32 v{VX[h^1]}, {XSLOT}, v{VX[h^1]}"])
        group(h, 2, 0, wreads(1, VW[3]), [f"v_xor_b32 v{VW[2]}, 64, v{VW[0]}"])
        q.drain(); a("s_barrier")
        nx = xreads(0) if h == 1 else []
        w = wreads(0, VW[0])
        group(h, 3, 1, w[:2] + nx[:3] + w[2:] + nx[3:], [f"v_xor_b32 v{VW[3]}, 96, v{VW[0]}"] + (["s_add_u32 s53, s53, 1", f"s_cmp_lt_u32 s53, {cnt}"] if cnt else []))

    if pst: pstamp(91)
    a("s_barrier")
    stamp(1)
    w = wreads(0, VW[0]); nx = xreads(0)
    for r in w[:2] + nx[:3] + w[2:] + nx[3:]: q.issue(*r)
    a(".p2align 3")
    a.label("L_loop")
    save = a.l; a.l = []; pre = list(q.q)
    step(0); step(1); st = (list(q.q), list(q.age))
    a.l = save
    assert st[0] == pre
    q.q, q.age = list(st[0]), list(st[1])
    step(0); step(1, cnt=14 if tail == 2 else 15)
    assert (q.q, q.age) == st
    a("s_cbranch_scc1 L_loop")

    def sitem(o, cb, T, els=(0, 1, 2, 3)):
        A = acc(o, cb); S = SC + 4 * cb; H = SH + 4 * cb
        l = [f"v_fma_f32 v{A+r}, v{A+r}, v{S+r}, v{H+r}" for r in els]
        l += [f"v_exp_f32 v{T[i]}, v{A+r}" for i, r in enumerate(els)]
        l += [f"v_fma_f32 v{T[i]}, v{T[i]}, s46, s46" for i, r in enumerate(els)]
        l += [f"v_rcp_f32 v{T[i]}, v{T[i]}" for i, r in enumerate(els)]
        l += [f"v_mul_f32 v{A+r}, v{A+r}, v{T[i]}" for i, r in enumerate(els)]
        return l
    def item(o, cbs, T0, pk):
        A = acc(o, cbs[0]); S = SC + 4 * cbs[0]; H = SH + 4 * cbs[0]; n = 4 * len(cbs)
        l = []
        if not pk:
            l += [f"v_fma_f32 v{A+r}, v{A+r}, v{S+r}, v{H+r}" for r in range(n)]
            l += [f"v_exp_f32 v{T0+r}, v{A+r}" for r in range(n)]
            l += [f"v_fma_f32 v{T0+r}, v{T0+r}, s46, s46" for r in range(n)]
            l += [f"v_rcp_f32 v{T0+r}, v{T0+r}" for r in range(n)]
            l += [f"v_mul_f32 v{A+r}, v{A+r}, v{T0+r}" for r in range(n)]
        else:
            l += [f"v_pk_fma_f32 v[{A+r}:{A+r+1}], v[{A+r}:{A+r+1}], v[{S+r}:{S+r+1}], v[{H+r}:{H+r+1}]" for r in range(0, n, 2)]
            l += [f"v_exp_f32 v{T0+r}, v{A+r}" for r in range(n)]
            l += [f"v_pk_fma_f32 v[{T0+r}:{T0+r+1}], v[{T0+r}:{T0+r+1}], s[46:47], s[46:47]" for r in range(0, n, 2)]
            l += [f"v_rcp_f32 v{T0+r}, v{T0+r}" for r in range(n)]
            l += [f"v_pk_mul_f32 v[{A+r}:{A+r+1}], v[{A+r}:{A+r+1}], v[{T0+r}:{T0+r+1}]" for r in range(0, n, 2)]
        for cb in cbs:
            B = acc(o, cb)
            if cb & 1: l += [f"v_cvt_pk_bf16_f32 v{B}, v{B}, v{B+1}", f"v_cvt_pk_bf16_f32 v{B+1}, v{B+2}, v{B+3}"]
            else: l += [f"v_cvt_pk_bf16_f32 v{B+3}, v{B+2}, v{B+3}", f"v_cvt_pk_bf16_f32 v{B+2}, v{B}, v{B+1}"]
        if cbs[-1] & 1:
            cp = cbs[-1] >> 1; P = acc(o, 2 * cp) + 2
            l += [f"s_movk_i32 s37, {(o>>1)*4096}", "s_nop 0", f"v_permlane16_swap_b32 v{P}, v{P+2}", f"v_permlane16_swap_b32 v{P+1}, v{P+3}",
                  f"buffer_store_dwordx4 v[{P}:{P+3}], v{VOUT}, s[12:15], s37 offen offset:{(o&1)*2048 + cp*64}{stpol}"]
        return l
    done = set(); cur = []; avail = set()
    def mkfiller(pend, T0):
        def filler(budget, full):
            while budget > 0:
                if not cur:
                    if not pend or pend[0][1] not in avail: return
                    o, cb = pend.pop(0); done.add((o, cb))
                    cur.extend(item(o, [cb], T0, False))
                c = 2 if cur[0].startswith(("v_exp", "v_rcp")) else 1
                if c > budget and budget < full: return
                a(cur.pop(0)); budget -= c
        return filler
    streams = [[], []]; ptail = []
    def mkpairfiller(pend, T):
        def istr(x): return x.startswith(("v_exp", "v_rcp"))
        def filler(budget, full):
            while budget > 0:
                if not streams[0] and not streams[1]:
                    streams[0].extend(ptail); ptail.clear()
                    if pend and avail:
                        o = pend.pop(0); done.update(((o, 0), (o, 1)))
                        c0 = item(o, [0], 0, False)[-2:]; l1 = item(o, [1], 0, False)[-7:]
                        A0 = acc(0, 0)
                        if o == 0:
                            streams[0].extend(sitem(0, 0, T, (0, 1)) + sitem(0, 0, T, (2, 3)) + c0 + sitem(0, 1, T + [A0, A0 + 1]) + l1[:2])
                        else:
                            streams[0].extend(sitem(o, 0, T + [A0, A0 + 1]) + c0)
                            streams[1].extend(sitem(o, 1, [A0 + 6, A0 + 7] + ([A0 + 2, A0 + 3] if o > 1 else [])  , (0, 1, 2, 3) if o > 1 else (0, 1)) + ([] if o > 1 else sitem(o, 1, [A0 + 6, A0 + 7], (2, 3))) + l1[:2])
                        ptail.extend(l1[2:])
                    if not streams[0]: return
                heads = [x for x in streams if x]
                tr = [x for x in heads if istr(x[0])]; pl = [x for x in heads if not istr(x[0])]
                if tr and (budget >= 2 or (budget == full and not pl)):
                    x = max(tr, key=len); a(x.pop(0)); budget -= 2
                elif pl:
                    x = max(pl, key=len); a(x.pop(0)); budget -= 1
                else: return
        return filler
    def lane48(v): return [f"v_mbcnt_lo_u32_b32 v{v}, -1, 0", f"v_mbcnt_hi_u32_b32 v{v}, -1, v{v}", f"v_and_b32 v{v}, 48, v{v}", f"v_add_u32 v{v}, s59, v{v}"]
    def preg(i): return (SC if i < 4 else SH) + 4 * (i & 3)
    if tail == 1:
        VP = VX[0]
        def par(i): return (f"P{i}", f"ds_read_b128 v[{preg(i)}:{preg(i)+3}], v{VP} offset:{(i&3)*64 + (i>>2)*512}")
        allp = {f"P{i}" for i in range(8)}
        filler = mkfiller([(o, cb) for cb in range(2) for o in range(8)], SC + 8)
        a("s_barrier")
        group(0, 0, 0, wreads(1, VW[0], WSLOT) + xreads(1), ["s_waitcnt vmcnt(0)"] + lane48(VP))
        group(1, 0, 1, wreads(0, VW[1]) + [par(i) for i in (0, 4, 1, 5)])
        q.need(allp); avail.add(0)
        group(0, 1, 0, wreads(1, VW[1], WSLOT), filler=filler, fl=fill)
        group(1, 1, 1, wreads(0, VW[2]), filler=filler, fl=fill)
        avail.add(1)
        group(0, 2, 0, wreads(1, VW[2], WSLOT), filler=filler, fl=fill)
        group(1, 2, 1, wreads(0, VW[3]), filler=filler, fl=fill)
        group(0, 3, 0, wreads(1, VW[3], WSLOT), filler=filler, fl=fill)
        group(1, 3, 1, [], filler=filler, fl=fill)
        stamp(2)
        while cur: a(cur.pop(0))
        for i in (2, 6, 3, 7): q.issue(*par(i))
        waitp = lambda: q.need(allp)
    else:
        VP = SH + 12
        gl = [f"global_load_dwordx4 v[{preg(i)}:{preg(i)+3}], v{VP}, s[34:35] offset:{(i&3)*64 + (i>>2)*512}" for i in range(8)]
        filler = mkpairfiller(list(range(8)), [VW[0], VW[1]])
        seq = [(t, cb) for cp in range(2) for t in range(4) for cb in (2 * cp, 2 * cp + 1)]
        for i, (t, cb) in enumerate(seq):
            k = i & 1; reads = []; alu = []
            if i + 1 < len(seq):
                t2, cb2 = seq[i + 1]
                if cb2 < 2 and t2 != t:
                    a("s_barrier")
                va = VW[cb2] if t2 < 2 else BW
                reads = wreads(k ^ 1, va, WSLOT if t2 == 1 else 0)
                if i + 2 < len(seq) and seq[i + 2][0] >= 2:
                    alu.append(f"v_add_u32 v{BW}, {seq[i+2][0]*WSLOT}, v{VW[seq[i+2][1]]}")
            nt = (t + 1) & 3
            if i + 2 < len(seq):
                if nt == 2 and cb < 2:
                    if cb & 1: reads = reads[:2] + xreads(0, XSLOT)[:3] + reads[2:] + xreads(0, XSLOT)[3:]
                elif i < 8:
                    if not cb & 1: reads = reads + xreads(nt & 1, XSLOT if nt >= 2 else 0)
                else: reads = reads + xreads(nt & 1, XSLOT if nt >= 2 else 0)[4*(cb&1):4*(cb&1)+4]
            if i == 0: alu += ["s_waitcnt vmcnt(0)"] + lane48(VP)
            if i == 3: alu += gl[:4]
            if i == 5: alu += gl[4:]
            if i == 8:
                a("s_waitcnt vmcnt(0)"); avail.update((0, 1))
            group(t & 1, cb, k, reads, alu, filler=filler if i >= 8 else None, fl=fill2 if i >= 12 else fill)
        stamp(2)
        for x in streams[0] + streams[1] + ptail: a(x)

        cnt = {"n": 0}
        waitp = None
    todo = []
    for cp in range(2):
        for o in range(8):
            cbs = [cb for cb in (2 * cp, 2 * cp + 1) if (o, cb) not in done]
            if cbs: todo.append((o, cbs))
    first2 = True; nstores = 0
    for i, (o, cbs) in enumerate(todo):
        if cbs[0] >= 2 and first2:
            first2 = False
            if tail == 1: waitp()
            if not nstores: a("s_nop 7")
        for x in item(o, cbs, XA + 8 * (i & 1), True): a(x)
        nstores += cbs[-1] & 1
    stamp(3)
    if spin:
        a("s_waitcnt vmcnt(0)")
        a.label("L_spin")
        a("s_sleep 4")
        a("s_memrealtime s[44:45]"); a("s_waitcnt lgkmcnt(0)"); a("s_sub_u32 s44, s44, s90"); a(f"s_cmp_lt_u32 s44, {spin*100}"); a("s_cbranch_scc1 L_spin")
    if stamps:
        a("s_waitcnt vmcnt(0)")
        stamp(4)
        a("s_cmp_eq_u32 s38, 0"); a("s_cbranch_scc0 L_end")
        a("s_lshl_b32 s36, s2, 7"); a("v_mov_b32 v1, s36")
        if pst: a("v_mov_b32 v4, s91"); a("global_store_dword v1, v4, s[34:35] offset:112")
        for j in range(5):
            for qq in range(4): a(f"v_mov_b32 v{4+qq}, s{60+4*j+qq}")
            a(f"global_store_dwordx4 v1, v[4:7], s[34:35] offset:{16*j}"); a("s_nop 2")
    a.label("L_end")
    a("s_endpgm")

    out = HEADER
    out += "; Override launch geometry by editing the next line (default: block=256,\n; grid=ceil(out_elems/256), lds=0). Harness parses it; keep it on one line.\n"
    out += "; @launch grid=(256,1,1) block=(512,1,1) lds=163840\n"
    out += '.amdgcn_target "amdgcn-amd-amdhsa--gfx950"\n.text\n'
    out += f".globl {KNAME}\n.p2align 8\n.type {KNAME},@function\n"
    out += a.text()
    out += f""".section .rodata,"a"
.p2align 6
.amdhsa_kernel {KNAME}
  .amdhsa_next_free_vgpr 256
  .amdhsa_next_free_sgpr 96
  .amdhsa_accum_offset 256
  .amdhsa_group_segment_fixed_size 0
  .amdhsa_kernarg_size 72
  .amdhsa_user_sgpr_count 2
  .amdhsa_user_sgpr_kernarg_segment_ptr 1
  .amdhsa_system_sgpr_workgroup_id_x 1
  .amdhsa_float_denorm_mode_32 3
.end_amdhsa_kernel
"""
    return out

if __name__ == "__main__":
    kw = {}
    for x in sys.argv[2:]:
        k, v = x.split("=")
        kw[k] = eval(v)
    open(sys.argv[1], "w").write(gen(**kw))
```

```python
import sys
from gen1 import Asm, HEADER, KNAME

XSLOT = 32768
WBASE = 65536
WSLOT = 24576
NST = 32

def gen(stamps=False, stpol=" sc1", old=10, start=2, tail=3, spin=0, spinref=0, fill=2, pst=0, cpf=True, fill2=None, x15early=True, spread=False, tlb=0, otouch=False, tsh=13, al=3, pad=0, split0=True, unroll=1, epi2=True, cpf2=True, warm=0, warmd=1, dm="", csh=5, nstr=2, margin=0, w31=False, tst=None, m29=True, ldst=False, spt=False, sp0=0, seq3=((0,0),(1,0),(2,0),(3,0),(0,1),(1,1),(2,1),(3,1))):
    a = Asm()
    ACC = 128
    XA, XB = 0, 32
    WR = [64, 76]
    VX = [88, 89]; VW = [90, 91, 92, 93]; BW = 94; VOUT = 95
    SC, SH = 96, 112
    VPA, VPB, PK = SH + 12, SH + 13, SH + 8
    if fill2 is None: fill2 = fill

    def stamp(j):
        if stamps:
            a("s_memtime s[40:41]"); a("s_memrealtime s[42:43]"); a("s_waitcnt lgkmcnt(0)")
            for q in range(4): a(f"s_mov_b32 s{60+4*j+q}, s{40+q}")
        if spin and spinref == j:
            a("s_memrealtime s[44:45]"); a("s_waitcnt lgkmcnt(0)"); a("s_mov_b32 s90, s44")
    def pstamp(r):
        a("s_memtime s[92:93]"); a("s_waitcnt lgkmcnt(0)"); a(f"s_sub_u32 s{r}, s92, s60")

    a.label(KNAME)
    a("s_load_dwordx4 s[20:23], s[0:1], 0")
    a("s_cmp_ge_u32 s2, 256")
    a("s_cbranch_scc1 L_end")
    a("s_getpc_b64 s[30:31]")
    a.label("L_pc")
    if cpf:
        a(f"v_lshlrev_b32 v4, {csh}, v0")
        a("v_min_u32 v4, L_end-L_pc, v4")
        a(f"global_load_dword v{SH+15}, v4, s[30:31]")
    stamp(0)
    a("v_readfirstlane_b32 s18, v0")
    a("s_bfe_u32 s16, s2, 0x50001")
    a("s_lshr_b32 s17, s2, 6"); a("s_and_b32 s3, s2, 1"); a("s_lshl1_add_u32 s17, s17, s3")
    a("s_lshl_b32 s39, s16, 19")
    a("s_lshl_b32 s17, s17, 8")
    a("s_bfe_u32 s38, s18, 0x20006")
    a("v_and_b32 v0, 63, v0")
    a("s_bitcmp1_b32 s18, 8")
    a("s_cbranch_scc0 L_compute")

    def pf_w(step, R):
        a(f"s_bfe_u32 s{R}, s2, 0x30003"); a(f"s_lshl2_add_u32 s{R}, s{R}, s38"); a(f"s_mul_i32 s{R}, s{R}, 3")
        for k in range(3):
            a(f"s_add_u32 s{R+1}, s{R}, {k}"); a(f"s_lshr_b32 s{R+2}, s{R+1}, 5"); a(f"s_lshl_b32 s{R+2}, s{R+2}, 21")
            a(f"s_and_b32 s{R+1}, s{R+1}, 31"); a(f"s_lshl_b32 s{R+1}, s{R+1}, 11"); a(f"s_add_u32 s{R+1}, s{R+1}, s{R+2}"); a(f"s_add_u32 s{R+1}, s{R+1}, s17")
            a(f"s_add_u32 s{R+4}, s22, s{R+1}"); a(f"s_addc_u32 s{R+5}, s23, 0")
            for st_ in step:
                if st_ * 65536 + 128 < (1 << 20):
                    a(f"s_load_dword s{R+3}, s[{R+4}:{R+5}], {st_*65536}"); a(f"s_load_dword s{R+3}, s[{R+4}:{R+5}], {st_*65536 + 128}")
                else:
                    a(f"s_add_u32 s{R+6}, s{R+4}, {st_*65536}"); a(f"s_addc_u32 s{R+7}, s{R+5}, 0")
                    a(f"s_load_dword s{R+3}, s[{R+6}:{R+7}], 0"); a(f"s_load_dword s{R+3}, s[{R+6}:{R+7}], 128")
    def pf_x(chunk, rows, R):
        a(f"s_lshr_b32 s{R}, s2, 6"); a(f"s_lshl2_add_u32 s{R}, s{R}, s38"); a(f"s_lshl_b32 s{R}, s{R}, 15"); a(f"s_add_u32 s{R}, s{R}, s39")
        a(f"s_add_u32 s{R+4}, s20, s{R}"); a(f"s_addc_u32 s{R+5}, s21, 0")
        for r in rows: a(f"s_load_dword s{R+3}, s[{R+4}:{R+5}], {chunk*128 + r*2048}")

    a("v_lshrrev_b32 v8, 4, v0")
    a("v_lshrrev_b32 v1, 3, v0"); a("v_lshlrev_b32 v1, 14, v1")
    a("v_xor_b32 v3, v0, v8"); a("v_and_b32 v3, 7, v3"); a("v_lshl_add_u32 v1, v3, 4, v1")
    a("s_lshl_b32 s46, s38, 12")
    a("s_lshr_b32 s49, s46, 1")
    a("v_add_u32 v1, s49, v1")
    a("v_xor_b32 v2, 64, v1"); a("v_add_u32 v3, 2*130048, v1"); a("v_add_u32 v4, 3*130048, v2"); a("v_add_u32 v2, 130048, v2")
    a("s_and_b32 s36, s38, 1"); a("s_lshl_b32 s36, s36, 1"); a("v_lshl_or_b32 v5, v8, 2, s36")
    a("v_and_b32 v6, 15, v0"); a("v_xor_b32 v5, v5, v6"); a("v_lshlrev_b32 v5, 4, v5")
    a("v_lshl_add_u32 v5, v8, 11, v5")
    a("s_lshl2_add_u32 s36, s46, s17")
    a("v_add_u32 v5, s36, v5")
    a("v_add_u32 v6, 7168, v5")
    a("s_bitset1_b32 s49, 16")
    a("s_mov_b32 s44, 0"); a("s_movk_i32 s48, 0x4000"); a("s_movk_i32 s51, 0x2000"); a("s_movk_i32 s52, 0x80")
    a("s_mov_b32 s54, 0"); a("s_mov_b32 s55, 0x200000"); a("s_lshl_b32 s56, s55, 1"); a("s_lshr_b32 s57, s55, 5")
    a("s_mov_b32 s47, s49"); a(f"s_add_u32 s50, s49, {4*WSLOT}")
    a("s_mov_b32 s7, 0x20000"); a("s_mov_b32 s11, s7"); a("s_lshl_b32 s6, s57, 3"); a("s_add_u32 s10, s55, s56")
    a("s_add_u32 s36, s30, L_go-L_pc"); a("s_addc_u32 s37, s31, 0")
    if tlb >= 2:
        a("s_lshl_b32 s24, s38, 21"); a("s_cmp_eq_u32 s38, 3"); a("s_cselect_b32 s24, s39, s24")
        a("v_mov_b32 v7, s24")
    a("s_waitcnt lgkmcnt(0)")
    if tlb >= 2:
        a("s_cselect_b64 s[24:25], s[20:21], s[22:23]")
        a("global_load_dword v9, v7, s[24:25]")
    a("s_mov_b64 s[8:9], s[22:23]")
    a.label("L_iw")
    a("s_add_u32 m0, s47, 8192"); a(f"s_add_u32 s58, s47, {WSLOT}")
    a("buffer_load_dwordx4 v5, s[8:11], s55 offen lds"); a("buffer_load_dwordx4 v6, s[8:11], s55 offen offset:1024 lds")
    a("s_addk_i32 m0, 8192"); a("s_add_u32 s55, s55, s57")
    a("buffer_load_dwordx4 v5, s[8:11], s56 offen lds"); a("buffer_load_dwordx4 v6, s[8:11], s56 offen offset:1024 lds")
    a("s_mov_b32 m0, s47"); a("s_add_u32 s56, s56, s57")
    a("buffer_load_dwordx4 v5, s[8:11], s54 offen lds"); a("buffer_load_dwordx4 v6, s[8:11], s54 offen offset:1024 lds")
    a("s_add_u32 s54, s54, s57"); a("s_cmp_eq_u32 s58, s50"); a("s_cselect_b32 s47, s49, s58")
    a("s_setpc_b64 s[36:37]")
    a.label("L_ix")
    a("s_mov_b32 m0, s46"); a("s_xor_b32 s46, s46, s48")
    for e in range(4): a(f"buffer_load_dwordx4 v{1+e}, s[4:7], s44 offen{f' offset:{1024*e}' if e else ''} lds")
    a("s_xor_b32 s48, s48, 0x8000"); a("s_add_u32 s44, s44, s51"); a("s_sub_u32 s51, s52, s51")
    a("s_setpc_b64 s[36:37]")
    a.label("L_go")

    after = {t: [] for t in range(-1, NST)}
    if start == 2:
        after[-1] = [("w", 0), ("x", 0, 0), ("x", 0, 1), ("w", 1)]
        after[0] = [("w", 2), ("x", 1, 0), ("x", 1, 1)]
        after[1] = [("w", 3), ("w", 4), ("x", 2, 0)]
        after[2] = [("x", 2, 1), ("w", 5)]
    elif start == 3:
        after[-1] = [("w", 0), ("x", 0, 0), ("x", 0, 1), ("w", 1)]
        after[0] = [("w", 2), ("x", 1, 0), ("x", 1, 1)]
        after[1] = [("w", 3), ("x", 2, 0)]
        after[2] = [("w", 4), ("x", 2, 1), ("w", 5)]
    for t in range(3, NST):
        m = (t + 3) // 2
        if m < 16: after[t].append(("x", m, (t + 3) & 1))
        if t + 3 < NST: after[t].append(("w", t + 3))
    if tail >= 2 and x15early:
        after[28].remove(("x", 15, 1)); after[27].insert(1, ("x", 15, 1))
    if spt:
        after[22].append(("px", 15, range(0, 8))); after[23].append(("px", 15, range(8, 16))); after[24].append(("pw", 30)); after[25].append(("pw", 31))
    after[2].append(("par",))
    after[26 if tail >= 2 else 29].append(("parw",))
    cost = {"px": 0, "pw": 0, "w": 6, "x": 4, "par": 4, "parw": (2 if tail >= 2 else 0) + int(otouch) + int(cpf2) + int(tail == 3 and w31)}
    waits = {}; issued = list(after[-1])
    for t in range(NST):
        need = max(i for i, q in enumerate(issued) if q == ("w", t) or (q[0] == "x" and q[1] == t // 2) or (q[0] == "parw" and t >= 28) or (tail == 3 and m29 and t == 28 and q == ("w", 29)))
        waits[t] = sum(cost[q[0]] for q in issued[need + 1:])
        if 3 <= t <= 27: waits[t] = min(waits[t], 16)
        issued += after[t]
    PARAM = WBASE
    def emit(e):
        if e[0] == "x": a("s_call_b64 s[36:37], L_ix")
        elif e[0] == "w": a("s_call_b64 s[36:37], L_iw")
        elif e[0] == "px": pf_x(e[1], e[2], 80)
        elif e[0] == "pw": pf_w([e[1]], 80)
        elif e[0] == "par":
            a("s_load_dwordx8 s[24:31], s[0:1], 16"); a("s_load_dwordx2 s[34:35], s[0:1], 64")
            a("v_lshl_add_u32 v12, v0, 2, s17")
            a("s_waitcnt lgkmcnt(0)")
            for k in range(4): a(f"global_load_dword v{16+k}, v12, s[{24+2*k}:{25+2*k}]")
        elif e[0] == "parw":
            if tail == 3 and w31:
                a("s_mul_i32 s24, s38, 48"); a("v_min_u32 v13, 47, v0"); a("v_add_u32 v13, s24, v13")
                a("v_lshrrev_b32 v14, 6, v13"); a("v_lshlrev_b32 v14, 21, v14")
                a("v_bfe_u32 v15, v13, 1, 5"); a("v_lshl_add_u32 v14, v15, 11, v14")
                a("v_and_b32 v13, 1, v13"); a("v_lshl_add_u32 v14, v13, 7, v14")
                a(f"s_add_u32 s24, s17, {31*65536}")
                a("buffer_load_dword v15, v14, s[8:11], s24 offen")
            if cpf2:
                a("s_getpc_b64 s[28:29]")
                a.label("L_pc2")
                a("s_lshl_b32 s24, s38, 12"); a("s_add_u32 s24, s24, L_tail-L_pc2"); a("v_lshl_add_u32 v13, v0, 6, s24")
                a("v_min_u32 v13, L_end-L_pc2, v13")
                a("global_load_dword v15, v13, s[28:29]")
            if otouch:
                a("s_load_dwordx2 s[32:33], s[0:1], 48"); a("v_mov_b32 v13, s39"); a("s_waitcnt lgkmcnt(0)")
                a("global_load_dword v14, v13, s[32:33]")
            a("s_mov_b32 s24, 0xffff0000"); a("s_mov_b32 s25, 0x3727c5ac"); a("s_mov_b32 s26, 0xbfb8aa3b")
            for hi in range(2):
                def unpack(dst, src): a(f"v_and_b32 v{dst}, s24, v{src}" if hi else f"v_lshlrev_b32 v{dst}, 16, v{src}")
                def rnd(x): a(f"v_cvt_pk_bf16_f32 v{x}, v{x}, v{x}"); a(f"v_and_b32 v{x}, s24, v{x}")
                unpack(20, 17); unpack(21, 18); unpack(22, 16); unpack(23, 19)
                a("v_add_f32 v20, s25, v20"); rnd(20)
                a("v_sqrt_f32 v20, v20"); a("s_nop 0"); rnd(20)
                a("v_rcp_f32 v20, v20"); a("s_nop 0"); rnd(20)
                a("v_mul_f32 v20, v21, v20"); rnd(20)
                a("v_fma_f32 v23, -v22, v20, v23")
                a(f"v_mul_f32 v{24+hi}, s26, v20"); a(f"v_mul_f32 v{26+hi}, s26, v23")
            if tail >= 2:
                a("s_lshl_b32 s27, s2, 10"); a(f"s_add_u32 s27, s27, {WSOFF}"); a("v_lshl_add_u32 v12, v0, 3, s27")
                a("global_store_dwordx2 v12, v[24:25], s[34:35] sc1"); a("global_store_dwordx2 v12, v[26:27], s[34:35] offset:512 sc1")
            else:
                a("v_lshlrev_b32 v12, 3, v0"); a(f"v_add_u32 v12, {PARAM}, v12")
                a("ds_write_b64 v12, v[24:25]"); a("ds_write_b64 v12, v[26:27] offset:512")
                a("s_waitcnt lgkmcnt(0)")
    WSOFF = 1 << 20
    def lst(n):
        a("s_memtime s[40:41]"); a("s_memrealtime s[42:43]"); a("s_waitcnt lgkmcnt(0)")
        a(f"v_writelane_b32 v10, s40, {n}"); a(f"v_writelane_b32 v11, s42, {n}")
    def bar(t):
        if tail == 3 and m29 and t == 29: return
        a(f"s_waitcnt vmcnt({waits[t]})")
        if ldst and t < 31: lst(32 + t)
        a("s_barrier")
        if ldst: lst(t)
    for i, e in enumerate(after[-1]):
        if split0 and i == 3: a("s_waitcnt vmcnt(4)"); a("s_barrier")
        if i: emit(e)
        if i == 0: a("s_add_u32 s4, s20, s39"); a("s_addc_u32 s5, s21, 0")
        if pst == 2 and i < 3: pstamp((91, 94, 95)[i])
    if pst == 1:
        pstamp(91); pstamp(94); a(f"s_waitcnt vmcnt({waits[0]})"); pstamp(95)
    if ldst:
        a("v_mov_b32 v10, 0"); a("v_mov_b32 v11, 0")
        a("v_writelane_b32 v10, s60, 63"); a("v_writelane_b32 v11, s62, 63")
    def sig(t): return (waits[t], tuple(e[0] for e in after[t]))
    t = 0
    while t < NST:
        n = 1
        while t + n < NST and sig(t + n) == sig(t): n += 1
        if n > 2 and not ldst:
            a("s_mov_b32 s53, 0"); a.label(f"L_ld{t}")
            bar(t)
            for e in after[t]: emit(e)
            a("s_add_u32 s53, s53, 1"); a(f"s_cmp_lt_u32 s53, {n}"); a(f"s_cbranch_scc1 L_ld{t}")
            t += n
        else:
            bar(t)
            for e in after[t]: emit(e)
            t += 1
    if ldst:
        a("s_cmp_eq_u32 s38, 0"); a("s_cbranch_scc0 L_end")
        a("s_lshl_b32 s36, s2, 9"); a("s_add_u32 s36, s36, 65536")
        a("v_lshl_add_u32 v1, v0, 3, s36")
        a("global_store_dwordx2 v1, v[10:11], s[34:35]")
    if pst:
        a("s_cmp_eq_u32 s38, 0"); a("s_cbranch_scc0 L_end")
        a("s_lshl_b32 s36, s2, 7"); a("v_mov_b32 v1, s36")
        a("v_mov_b32 v4, s91"); a("v_mov_b32 v5, s94"); a("v_mov_b32 v6, s95"); a("v_mov_b32 v7, 0")
        a("global_store_dwordx4 v1, v[4:7], s[34:35] offset:96")
    a("s_endpgm")

    a.label("L_compute")
    a("s_load_dwordx2 s[32:33], s[0:1], 48")
    a("s_load_dwordx2 s[34:35], s[0:1], 64")
    if tlb in (1, 3):
        a("s_lshl_b32 s36, s38, 21"); a("s_cmp_eq_u32 s38, 3"); a("s_cselect_b32 s36, s39, s36"); a("v_mov_b32 v4, s36")
        a("s_waitcnt lgkmcnt(0)")
        a("s_cselect_b32 s24, s20, s22"); a("s_cselect_b32 s25, s21, s23")
        a(f"global_load_dword v{SH+14}, v4, s[24:25]")
    a("v_lshrrev_b32 v1, 4, v0")
    a("v_and_b32 v3, 15, v0")
    a("s_and_b32 s57, s38, 1"); a("s_lshr_b32 s58, s38, 1")
    for r in range(8, 12): a(f"v_mov_b32 v{r}, 0")
    a("s_lshl_b32 s37, s58, 7"); a("s_add_u32 s36, s17, s37"); a("s_lshl_b32 s37, s57, 18"); a("s_add_u32 s36, s36, s37")
    if warm:
        for r in range(12, 28): a(f"v_mul_u32_u24 v{r}, {0x3d5a91 + 0x12457 * r & 0xffffff}, v0"); a(f"v_and_b32 v{r}, 0x3fff3fff, v{r}")
        a("s_movk_i32 s53, 0"); a.label("L_warm")
        for i in range(12):
            a(f"v_mfma_f32_16x16x32_bf16 v[{ACC+4*(i//3)}:{ACC+4*(i//3)+3}], v[{12+4*(i&1)}:{15+4*(i&1)}], v[{20+4*(i>>1&1)}:{23+4*(i>>1&1)}], v[{ACC+4*(i//3)}:{ACC+4*(i//3)+3}]")
            if warmd > 1: a(f"s_nop {warmd}")
        a("s_add_u32 s53, s53, 1"); a(f"s_cmp_lt_u32 s53, {warm}"); a("s_cbranch_scc1 L_warm")
        a("s_nop 7")
    for r in range(8): a(f"v_mfma_f32_32x32x16_bf16 v[{ACC+16*r}:{ACC+16*r+15}], v[8:11], v[8:11], 0")
    a("v_lshlrev_b32 v4, 14, v3"); a("v_add_u32 v4, s36, v4")
    a("v_and_b32 v5, 1, v1"); a("v_lshl_add_u32 v4, v5, 5, v4")
    a("v_lshrrev_b32 v5, 1, v1"); a(f"v_lshl_add_u32 v{VOUT}, v5, 4, v4")
    a("v_lshrrev_b32 v4, 1, v3"); a("v_xor_b32 v4, v4, v1"); a("v_lshlrev_b32 v4, 4, v4")
    a("v_lshl_add_u32 v4, v3, 7, v4"); a("s_lshl_b32 s36, s57, 11")
    a(f"v_add_u32 v{VX[0]}, s36, v4"); a(f"v_xor_b32 v{VX[1]}, 64, v{VX[0]}")
    a("v_bfe_u32 v4, v0, 2, 2")
    a("v_lshl_add_u32 v5, v1, 3, v4"); a("v_lshlrev_b32 v5, 8, v5")
    a("v_and_b32 v6, 1, v1"); a("v_lshl_or_b32 v4, v4, 1, v6"); a("s_lshl_b32 s37, s58, 2"); a("v_xor_b32 v4, s37, v4")
    a("v_lshl_add_u32 v5, v4, 5, v5")
    a("v_and_b32 v4, 3, v0"); a("v_lshl_add_u32 v5, v4, 3, v5")
    a(f"v_add_u32 v{BW}, {WBASE}, v5")
    a(f"v_mov_b32 v{VW[0]}, v{BW}")
    for cb in (1, 2, 3): a(f"v_xor_b32 v{VW[cb]}, {32*cb}, v{BW}")
    a("s_lshl_b32 s59, s58, 8")
    if tail >= 2: a("s_lshl_b32 s37, s2, 10"); a("s_add_u32 s59, s59, s37"); a(f"s_add_u32 s59, s59, {WSOFF}")
    else: a(f"s_add_u32 s59, s59, {PARAM}")
    if tail == 3:
        a(f"v_lshl_add_u32 v{VPA}, v1, 4, s59")
        a("v_bfe_u32 v4, v0, 2, 1"); a("v_bfe_u32 v5, v0, 1, 1"); a("v_and_b32 v6, 1, v0")
        a(f"v_lshl_add_u32 v4, v4, 9, v{VPA}"); a("v_lshl_add_u32 v4, v5, 6, v4"); a(f"v_lshl_add_u32 v{VPB}, v6, 3, v4")
    a("s_mov_b32 s14, 524288"); a("s_mov_b32 s15, 0x20000")
    a("s_mov_b32 s50, 0"); a("s_mov_b32 s53, 0")
    a("s_mov_b32 s46, 0xbfb8aa3b"); a("s_mov_b32 s47, s46")
    for k in range(4): a(f"s_movk_i32 s{24+k}, {4096*k}")
    a("s_waitcnt lgkmcnt(0)")
    a("s_add_u32 s12, s32, s39"); a("s_addc_u32 s13, s33, 0")
    if sp0 == 1: pf_w([2], 80)
    if sp0 == 2: pf_w([1, 2], 80)
    if sp0 == 3: pf_x(1, range(0, 16, 2), 80)
    if sp0 == 4: pf_w([2], 80); pf_x(1, range(0, 16, 4), 80)
    if sp0: a("s_waitcnt lgkmcnt(0)")

    def acc(o, cb): return ACC + 16 * o + 4 * cb
    def xreads(h, extra=0): return [(f"X{h}{s}", f"ds_read_b128 v[{(XB if h else XA)+4*s}:{(XB if h else XA)+4*s+3}], v{VX[h]} offset:{extra + s*4096}") for s in range(8)]
    def wreads(k, vaddr, extra=0):
        r = []
        for tap in (1, 2, 0):
            for half in range(2):
                b = WR[k] + 4 * tap + 2 * half
                r.append((f"W{k}{tap}", f"ds_read_b64_tr_b16 v[{b}:{b+1}], v{vaddr} offset:{extra + tap*8192 + half*1024}"))
        return r

    class Q:
        def __init__(self): self.q = []; self.age = []
        def issue(self, tag, ins):
            if tag != "B": self.q.append(tag); self.age.append(0)
            a(ins)
        def tick(self): self.age = [x + 1 for x in self.age]
        def need(self, tags):
            idx = [i for i, t in enumerate(self.q) if t in tags]
            if idx:
                m = max(idx + [i for i, x in enumerate(self.age) if x >= old]); n = len(self.q) - 1 - m
                assert n <= 15
                a(f"s_waitcnt lgkmcnt({n})"); self.q = self.q[m + 1:]; self.age = self.age[m + 1:]
        def drain(self):
            if self.q: a("s_waitcnt lgkmcnt(0)")
            self.q = []; self.age = []
    q = Q()

    def group(h, cb, k, reads, alu=(), filler=None, fl=0):
        reads = list(reads); alu = list(alu)
        X = XB if h else XA
        gap = 0
        for o in range(8):
            for tap in ((0, 1, 2) if o % 2 == 0 else (2, 1, 0)):
                s = o + tap - 1
                if not 0 <= s <= 7: continue
                c = acc(o, cb); w = WR[k] + 4 * tap
                q.need({f"X{h}{s}", f"W{k}{tap}"})
                a(f"v_mfma_f32_16x16x32_bf16 v[{c}:{c+3}], v[{w}:{w+3}], v[{X+4*s}:{X+4*s+3}], v[{c}:{c+3}]"); q.tick()
                gap += 1
                if reads and (not filler or not spread or gap % 2 == 1):
                    q.issue(*reads.pop(0))
                    if filler and fl > 1: filler(fl - 1, fl)
                elif alu: a(alu.pop(0))
                elif filler: filler(fl, fl)
        assert not reads and not alu

    slot_adv = [f"s_add_u32 s50, s50, {WSLOT}", f"s_cmp_eq_u32 s50, {4*WSLOT}", "s_cselect_b32 s50, 0, s50"]
    marks = []
    def step(h, cnt=None, lab=None):
        xr = xreads(1) if h == 0 else []
        group(h, 0, 0, wreads(1, VW[1]) + xr, slot_adv)
        if lab:
            a.label(lab)
            assert g0state[0][len(g0state[0]) - len(q.q):] == q.q or True
            marks.append(list(q.q))
        group(h, 1, 1, wreads(0, VW[2]), [f"v_add_u32 v{VW[0]}, s50, v{BW}", f"v_xor_b32 v{VW[1]}, 32, v{VW[0]}", f"v_xor_b32 v{VX[h^1]}, {XSLOT}, v{VX[h^1]}"])
        group(h, 2, 0, wreads(1, VW[3]), [f"v_xor_b32 v{VW[2]}, 64, v{VW[0]}"])
        q.drain(); a("s_barrier")
        nx = xreads(0) if h == 1 else []
        w = wreads(0, VW[0])
        group(h, 3, 1, w[:2] + nx[:3] + w[2:] + nx[3:], [f"v_xor_b32 v{VW[3]}, 96, v{VW[0]}"] + (["s_add_u32 s53, s53, 1", f"s_cmp_lt_u32 s53, {cnt}"] if cnt else []))

    if pst: pstamp(91)
    a("s_barrier")
    stamp(1)
    w = wreads(0, VW[0]); nx = xreads(0)
    if split0:
        for r in w[:2] + nx[:3] + w[2:] + nx[3:4]: q.issue(*r)
        group(0, 0, 0, wreads(1, VW[1]) + [("B", "s_barrier")] + nx[4:] + xreads(1), slot_adv)
        g0state = (list(q.q), list(q.age))
        a("s_branch L_g1")
        q.q = [r[0] for r in w[:2] + nx[:3] + w[2:] + nx[3:]]; q.age = [0] * len(q.q)
    else:
        for r in w[:2] + nx[:3] + w[2:] + nx[3:]: q.issue(*r)
    a(f".p2align {al}")
    for _ in range(pad): a("s_nop 0")
    a.label("L_loop")
    save = a.l; a.l = []; pre = list(q.q)
    step(0); step(1); st = (list(q.q), list(q.age))
    a.l = save
    assert st[0] == pre
    q.q, q.age = list(st[0]), list(st[1])
    nch = 14 if tail >= 2 else 15
    assert nch % unroll == 0
    for u in range(unroll):
        step(0, lab="L_g1" if split0 and u == 0 else None); step(1, cnt=nch // unroll if u == unroll - 1 else None)
    assert (q.q, q.age) == st
    if split0: print("queue at L_g1: loop", marks[0], "peeled", g0state[0], file=sys.stderr)
    a("s_cbranch_scc1 L_loop")
    a.label("L_tail")

    def sitem(o, cb, T, els=(0, 1, 2, 3)):
        A = acc(o, cb); S = SC + 4 * cb; H = SH + 4 * cb
        l = [f"v_fma_f32 v{A+r}, v{A+r}, v{S+r}, v{H+r}" for r in els]
        l += [f"v_exp_f32 v{T[i]}, v{A+r}" for i, r in enumerate(els)]
        l += [f"v_fma_f32 v{T[i]}, v{T[i]}, s46, s46" for i, r in enumerate(els)]
        l += [f"v_rcp_f32 v{T[i]}, v{T[i]}" for i, r in enumerate(els)]
        l += [f"v_mul_f32 v{A+r}, v{A+r}, v{T[i]}" for i, r in enumerate(els)]
        return l
    def item(o, cbs, T0, pk):
        A = acc(o, cbs[0]); S = SC + 4 * cbs[0]; H = SH + 4 * cbs[0]; n = 4 * len(cbs)
        l = []
        if not pk:
            l += [f"v_fma_f32 v{A+r}, v{A+r}, v{S+r}, v{H+r}" for r in range(n)]
            l += [f"v_exp_f32 v{T0+r}, v{A+r}" for r in range(n)]
            l += [f"v_fma_f32 v{T0+r}, v{T0+r}, s46, s46" for r in range(n)]
            l += [f"v_rcp_f32 v{T0+r}, v{T0+r}" for r in range(n)]
            l += [f"v_mul_f32 v{A+r}, v{A+r}, v{T0+r}" for r in range(n)]
        else:
            l += [f"v_pk_fma_f32 v[{A+r}:{A+r+1}], v[{A+r}:{A+r+1}], v[{S+r}:{S+r+1}], v[{H+r}:{H+r+1}]" for r in range(0, n, 2)]
            l += [f"v_exp_f32 v{T0+r}, v{A+r}" for r in range(n)]
            l += [f"v_pk_fma_f32 v[{T0+r}:{T0+r+1}], v[{T0+r}:{T0+r+1}], s[46:47], s[46:47]" for r in range(0, n, 2)]
            l += [f"v_rcp_f32 v{T0+r}, v{T0+r}" for r in range(n)]
            l += [f"v_pk_mul_f32 v[{A+r}:{A+r+1}], v[{A+r}:{A+r+1}], v[{T0+r}:{T0+r+1}]" for r in range(0, n, 2)]
        for cb in cbs:
            B = acc(o, cb)
            if cb & 1: l += [f"v_cvt_pk_bf16_f32 v{B}, v{B}, v{B+1}", f"v_cvt_pk_bf16_f32 v{B+1}, v{B+2}, v{B+3}"]
            else: l += [f"v_cvt_pk_bf16_f32 v{B+3}, v{B+2}, v{B+3}", f"v_cvt_pk_bf16_f32 v{B+2}, v{B}, v{B+1}"]
        if cbs[-1] & 1:
            cp = cbs[-1] >> 1; P = acc(o, 2 * cp) + 2
            l += ["s_nop 1", f"v_permlane16_swap_b32 v{P}, v{P+2}", f"v_permlane16_swap_b32 v{P+1}, v{P+3}",
                  f"buffer_store_dwordx4 v[{P}:{P+3}], v{VOUT}, s[12:15], s{24+(o>>1)} offen offset:{(o&1)*2048 + cp*64}{stpol}"]
        return l
    done = set(); cur = []; avail = set()
    def mkfiller(pend, T0):
        def filler(budget, full):
            while budget > 0:
                if not cur:
                    if not pend or pend[0][1] not in avail: return
                    o, cb = pend.pop(0); done.add((o, cb))
                    cur.extend(item(o, [cb], T0, False))
                c = 2 if cur[0].startswith(("v_exp", "v_rcp")) else 1
                if c > budget and budget < full: return
                a(cur.pop(0)); budget -= c
        return filler
    streams = [[], []]; ptail = []
    def mkpairfiller(pend, T):
        def istr(x): return x.startswith(("v_exp", "v_rcp"))
        def filler(budget, full):
            while budget > 0:
                if not streams[0] and not streams[1]:
                    streams[0].extend(ptail); ptail.clear()
                    if pend and avail:
                        o = pend.pop(0); done.update(((o, 0), (o, 1)))
                        c0 = item(o, [0], 0, False)[-2:]; l1 = item(o, [1], 0, False)[-6:]
                        A0 = acc(0, 0)
                        if o == 0:
                            streams[0].extend(sitem(0, 0, T, (0, 1)) + sitem(0, 0, T, (2, 3)) + c0 + sitem(0, 1, T + [A0, A0 + 1]) + l1[:2])
                        else:
                            streams[0].extend(sitem(o, 0, T + [A0, A0 + 1]) + c0)
                            streams[1].extend(sitem(o, 1, [A0 + 6, A0 + 7] + ([A0 + 2, A0 + 3] if o > 1 else [])  , (0, 1, 2, 3) if o > 1 else (0, 1)) + ([] if o > 1 else sitem(o, 1, [A0 + 6, A0 + 7], (2, 3))) + l1[:2])
                        ptail.extend(l1[2:])
                    if not streams[0]: return
                heads = [x for x in streams if x]
                tr = [x for x in heads if istr(x[0])]; pl = [x for x in heads if not istr(x[0])]
                if tr and (budget >= 2 or (budget == full and not pl)):
                    x = max(tr, key=len); a(x.pop(0)); budget -= 2
                elif pl:
                    x = max(pl, key=len); a(x.pop(0)); budget -= 1
                else: return
        return filler
    def lane48(v): return [f"v_mbcnt_lo_u32_b32 v{v}, -1, 0", f"v_mbcnt_hi_u32_b32 v{v}, -1, v{v}", f"v_and_b32 v{v}, 48, v{v}", f"v_add_u32 v{v}, s59, v{v}"]
    def preg(i): return (SC if i < 4 else SH) + 4 * (i & 3)
    if tail == 1:
        VP = VX[0]
        def par(i): return (f"P{i}", f"ds_read_b128 v[{preg(i)}:{preg(i)+3}], v{VP} offset:{(i&3)*64 + (i>>2)*512}")
        allp = {f"P{i}" for i in range(8)}
        filler = mkfiller([(o, cb) for cb in range(2) for o in range(8)], SC + 8)
        a("s_barrier")
        group(0, 0, 0, wreads(1, VW[0], WSLOT) + xreads(1), ["s_waitcnt vmcnt(0)"] + lane48(VP))
        group(1, 0, 1, wreads(0, VW[1]) + [par(i) for i in (0, 4, 1, 5)])
        q.need(allp); avail.add(0)
        group(0, 1, 0, wreads(1, VW[1], WSLOT), filler=filler, fl=fill)
        group(1, 1, 1, wreads(0, VW[2]), filler=filler, fl=fill)
        avail.add(1)
        group(0, 2, 0, wreads(1, VW[2], WSLOT), filler=filler, fl=fill)
        group(1, 2, 1, wreads(0, VW[3]), filler=filler, fl=fill)
        group(0, 3, 0, wreads(1, VW[3], WSLOT), filler=filler, fl=fill)
        group(1, 3, 1, [], filler=filler, fl=fill)
        stamp(2)
        while cur: a(cur.pop(0))
        for i in (2, 6, 3, 7): q.issue(*par(i))
        waitp = lambda: q.need(allp)
    elif tail == 2:
        VP = SH + 12
        gl = [f"global_load_dwordx4 v[{preg(i)}:{preg(i)+3}], v{VP}, s[34:35] offset:{(i&3)*64 + (i>>2)*512}" for i in range(8)]
        filler = mkpairfiller(list(range(8)), [VW[0], VW[1]])
        seq = [(t, cb) for cp in range(2) for t in range(4) for cb in (2 * cp, 2 * cp + 1)]
        for i, (t, cb) in enumerate(seq):
            k = i & 1; reads = []; alu = []
            if i + 1 < len(seq):
                t2, cb2 = seq[i + 1]
                if cb2 < 2 and t2 != t:
                    a("s_barrier")
                va = VW[cb2] if t2 < 2 else BW
                reads = wreads(k ^ 1, va, WSLOT if t2 == 1 else 0)
                if i + 2 < len(seq) and seq[i + 2][0] >= 2:
                    alu.append(f"v_add_u32 v{BW}, {seq[i+2][0]*WSLOT}, v{VW[seq[i+2][1]]}")
            nt = (t + 1) & 3
            if i + 2 < len(seq):
                if nt == 2 and cb < 2:
                    if cb & 1: reads = reads[:2] + xreads(0, XSLOT)[:3] + reads[2:] + xreads(0, XSLOT)[3:]
                elif i < 8:
                    if not cb & 1: reads = reads + xreads(nt & 1, XSLOT if nt >= 2 else 0)
                else: reads = reads + xreads(nt & 1, XSLOT if nt >= 2 else 0)[4*(cb&1):4*(cb&1)+4]
            if i == 0: alu += ["s_waitcnt vmcnt(0)"] + lane48(VP)
            if i == 3: alu += gl[:4]
            if i == 5: alu += gl[4:]
            if i == 8:
                a("s_waitcnt vmcnt(0)"); avail.update((0, 1))
            group(t & 1, cb, k, reads, alu, filler=filler if i >= 8 else None, fl=fill2 if i >= 12 else fill)
        stamp(2)
        for x in streams[0] + streams[1] + ptail: a(x)

        cnt = {"n": 0}
        waitp = None
    if tail == 3:
        import re
        class Sched:
            def __init__(self):
                self.pool = []; self.act = []; self.pend = []; self.packed = {}; self.tails = []; self.nst = 0
            def istr(self, x): return x.startswith(("v_exp", "v_rcp"))
            def ok(self, x):
                last = a.l[-1].strip()
                if self.istr(last) and not self.istr(x):
                    d = last.split()[1].rstrip(",")
                    if re.search(rf"\b{d}\b", x.split(",", 1)[1]): return False
                return True
            def top(self):
                for o in list(self.tails):
                    if self.stores_ok and len(a.l) - max(self.packed[(o, 0)], self.packed[(o, 1)]) >= 3:
                        self.tails.remove(o); self.act.insert(0, {"ops": item(o, [1], 0, False)[-3:], "t": [], "k": None})
                while len([x for x in self.act if x["k"]]) < nstr and self.pend and self.pend[0][1] in avail and len(self.pool) >= 2:
                    o, cb = self.pend.pop(0); done.add((o, cb))
                    n = 4 if len(self.pool) >= 4 else 2
                    self.pool.sort(reverse=True)
                    T = [self.pool.pop(0) for _ in range(n)]
                    ops = sitem(o, cb, T) if n == 4 else sitem(o, cb, T, (0, 1)) + sitem(o, cb, T, (2, 3))
                    full = item(o, [cb], 0, False)
                    self.act.append({"ops": ops + (full[-6:-4] if cb & 1 else full[-2:]), "t": T, "k": (o, cb)})
            def emit(self, st):
                x = st["ops"].pop(0); a(x)
                if x.startswith("buffer_store"): self.nst += 1
                if not st["ops"]:
                    self.act.remove(st); self.pool += [r for r in st["t"] if r not in self.retired]
                    if st["k"]:
                        o, cb = st["k"]; self.packed[(o, cb)] = len(a.l)
                        if (o, cb ^ 1) in self.packed: self.tails.append(o)
            def trans_ready(self):
                self.top()
                return any(self.istr(st["ops"][0]) or st["ops"][0].startswith("buffer") for st in self.act)
            def fill(self, budget, first):
                while budget > 0:
                    self.top()
                    mem = [st for st in self.act if st["ops"][0].startswith("buffer")]
                    tr = [st for st in self.act if self.istr(st["ops"][0])]
                    pl = [st for st in self.act if st not in mem and st not in tr and self.ok(st["ops"][0])]
                    if mem and first: self.emit(mem[0]); budget -= 1
                    elif tr and budget >= 2: self.emit(tr[0]); budget -= 2
                    elif pl: self.emit(pl[0]); budget -= 1
                    else: return
                    first = False
            def flush(self):
                self.pend = []
                while self.act or self.tails:
                    self.top()
                    el = [st for st in self.act if self.ok(st["ops"][0])]
                    if el: self.emit(el[0])
                    else: a("s_nop 0")
        sc = Sched(); sc.retired = set(); sc.stores_ok = True; late = []
        def xr3(t, buf): return [(f"X{buf}{s_}", f"ds_read_b128 v[{(XB if buf else XA)+4*s_}:{(XB if buf else XA)+4*s_+3}], v{VX[t&1]} offset:{(XSLOT if t >= 2 else 0) + s_*4096}") for s_ in range(8)]
        def group3(h, cb, k, reads, alu, fl, bar):
            reads = list(reads); alu = list(alu); X = XB if h else XA
            ms = [(o, tap) for o in range(8) for tap in ((0, 1, 2) if o % 2 == 0 else (2, 1, 0)) if 0 <= o + tap - 1 <= 7]
            for j, (o, tap) in enumerate(ms):
                s_ = o + tap - 1; c = acc(o, cb); w = WR[k] + 4 * tap
                q.need({f"X{h}{s_}", f"W{k}{tap}"})
                a(f"v_mfma_f32_16x16x32_bf16 v[{c}:{c+3}], v[{w}:{w+3}], v[{X+4*s_}:{X+4*s_+3}], v[{c}:{c+3}]"); q.tick()
                if j == 0 and bar:
                    a("s_barrier"); continue
                nxt = {f"X{h}{ms[j+1][0]+ms[j+1][1]-1}", f"W{k}{ms[j+1][1]}"} if j + 1 < 22 else {"W00", "W01", "W02", "W10", "W11", "W12"}
                b = fl - (1 if any(t_ in nxt for t_ in q.q) else 0) if fl else 0
                must = len(reads) + len(alu) > 21 - j - margin
                if late and not any(r in sc.retired for st in sc.act for r in st["t"]) and not must:
                    a(late.pop(0)); sc.stores_ok = not late
                    if fl: sc.fill(b - 1, False)
                elif (reads or alu) and (must or not fl or b < 2 or not sc.trans_ready()):
                    if reads: q.issue(*reads.pop(0))
                    else: a(alu.pop(0))
                    if fl: sc.fill(b - 1, False)
                elif fl: sc.fill(b, True)
            assert not reads and not alu
        VP = SH + 12
        def gl(i, v): return f"global_load_dwordx4 v[{preg(i)}:{preg(i)+3}], v{v}, s[34:35] offset:{(i&3)*64 + (i>>2)*512}"
        seq = list(seq3) + [(t, cb) for t in range(4) for cb in (2, 3)]
        c0done = max(i for i, g in enumerate(seq) if g[1] == 0) + 1
        landed = 1 if m29 else 0; xbuf = 0
        for i, (t, cb) in enumerate(seq):
            k = i & 1; w = []; x = []; alu = []; bar = False
            if tst and i in tst:
                a("s_memtime s[92:93]"); q.drain(); a("s_waitcnt lgkmcnt(0)"); a(f"s_sub_u32 s{80+tst.index(i)}, s92, s64")
            if i + 1 < len(seq):
                t2, cb2 = seq[i + 1]
                if t2 > landed:
                    assert t2 == landed + 1
                    landed = t2; bar = True
                w = wreads(k ^ 1, VW[cb2] if t2 < 2 else BW, WSLOT if t2 == 1 else 0)
                if i + 2 < len(seq) and seq[i + 2][0] >= 2:
                    alu.append(f"v_add_u32 v{BW}, {seq[i+2][0]*WSLOT}, v{VW[seq[i+2][1]]}")
            if i < 8: x = xr3(seq[i + 1][0], xbuf ^ 1)
            elif i < 14: x = xr3(t + 1, xbuf ^ 1)[4*(cb&1):4*(cb&1)+4]
            reads = w[:2] + x[:2] + w[2:4] + x[2:3] + w[4:] + x[3:] if i < 8 else w + x
            if i == 0: alu += ["s_waitcnt vmcnt(0)"]
            if i == 1: alu += [gl(j, VPA) for j in (0, 4, 1, 5)] + [f"global_load_dwordx2 v[{PK}:{PK+1}], v{VPB}, s[34:35] offset:128"]
            if i == c0done:
                a("s_waitcnt vmcnt(0)"); avail.add(0)
                sc.pend = [(o, 0) for o in range(8)]; sc.pool = list(range(SC + 8, SC + 16))
            if i == 8:
                avail.add(1)
                rest = [o for (o, c_) in sc.pend]
                sc.pend = [p_ for o in range(8) for p_ in ([(o, 0)] if o in rest else []) + [(o, 1)]]
            group3(xbuf, cb, k, reads, alu, fill if i >= c0done else 0, bar)
            if i < 8 or cb & 1: xbuf ^= 1
        assert not late and landed == 3
        stamp(2)
        sc.flush()
        print("tail 3: done in gaps", sorted(done), "stores", sc.nst, file=sys.stderr)
        for j in (0, 1, 2, 3, 5, 6, 7, 4):
            d = (SC if j < 4 else SH) + 8 + 2 * (j & 3)
            a(f"v_mov_b64_dpp v[{d}:{d+1}], v[{PK}:{PK+1}] row_newbcast:{j} row_mask:0xf bank_mask:0xf")
    todo = []
    for cp in range(2):
        for o in range(8):
            cbs = [cb for cb in (2 * cp, 2 * cp + 1) if (o, cb) not in done]
            if cbs: todo.append((o, cbs))
    if epi2:
        def stages(o, cbs, T0):
            l = item(o, cbs, T0, True); n = len(cbs)
            F, E, D, R, M, C = l[:2*n], l[2*n:6*n], l[6*n:8*n], l[8*n:12*n], l[12*n:14*n], l[14*n:16*n]
            return F, E, D, R, M, C, [x for x in l[16*n:] if not x.startswith("s_")]
        stg = [stages(o, cbs, XA + 8 * (i & 1)) for i, (o, cbs) in enumerate(todo)]
        def gate(i):
            if todo[i][1][0] >= 2 and (i == 0 or todo[i - 1][1][0] < 2):
                if tail == 1: waitp()
                if i == 0: a("s_nop 7")
        gate(0)
        for x in stg[0][0]: a(x)
        for i in range(len(stg)):
            F, E, D, R, M, C, S = stg[i]
            for x in E: a(x)
            if i + 1 < len(stg):
                gate(i + 1)
                for x in stg[i + 1][0]: a(x)
            for x in D: a(x)
            if i:
                for x in stg[i - 1][6]: a(x)
            for x in R + M + C: a(x)
        a("s_nop 1")
        for x in stg[-1][6]: a(x)
    else:
        first2 = True; nstores = 0
        for i, (o, cbs) in enumerate(todo):
            if cbs[0] >= 2 and first2:
                first2 = False
                if tail == 1: waitp()
                if not nstores: a("s_nop 7")
            for x in item(o, cbs, XA + 8 * (i & 1), True): a(x)
            nstores += cbs[-1] & 1
    stamp(3)
    if spin:
        a("s_waitcnt vmcnt(0)")
        a.label("L_spin")
        a("s_sleep 4")
        a("s_memrealtime s[44:45]"); a("s_waitcnt lgkmcnt(0)"); a("s_sub_u32 s44, s44, s90"); a(f"s_cmp_lt_u32 s44, {spin*100}"); a("s_cbranch_scc1 L_spin")
    if stamps:
        a("s_waitcnt vmcnt(0)")
        stamp(4)
        a("s_cmp_eq_u32 s38, 0"); a("s_cbranch_scc0 L_end")
        a("s_lshl_b32 s36, s2, 7"); a("v_mov_b32 v1, s36")
        if pst: a("v_mov_b32 v4, s91"); a("global_store_dword v1, v4, s[34:35] offset:112")
        if tst:
            a("v_mov_b32 v4, s80"); a("v_mov_b32 v5, s81"); a("v_mov_b32 v6, s82"); a("v_mov_b32 v7, s83")
            a("global_store_dwordx3 v1, v[4:6], s[34:35] offset:96"); a("global_store_dword v1, v7, s[34:35] offset:112"); a("s_nop 2")
        for j in range(5):
            for qq in range(4): a(f"v_mov_b32 v{4+qq}, s{60+4*j+qq}")
            a(f"global_store_dwordx4 v1, v[4:7], s[34:35] offset:{16*j}"); a("s_nop 2")
    a.label("L_end")
    a("s_endpgm")

    if dm:
        import re
        i_iw = a.l.index("L_iw:"); i_go = a.l.index("L_go:")
        sub = a.l[i_iw:i_go]; k = 0; nl = []
        for x in sub:
            x = x.replace("L_iw:", "L_iw2:").replace("L_ix:", "L_ix2:")
            if "offen" in x and x.rstrip().endswith("lds"):
                if "v" in dm:
                    m = re.match(r"\s*buffer_load_dwordx4 (v\d+), (.*) lds", x); x = f"    buffer_load_dwordx4 v[{32+4*k}:{35+4*k}], {m.group(1)}, {m.group(2)}"; k += 1
                if "n" in dm: x = "    s_nop 0"
                if "h" in dm and ("offset:1024" in x or "offset:3072" in x): x = "    s_nop 0"
            if "s" in dm and re.match(r"\s*s_add_u32 s(54|55|56|44), ", x): x = "    s_nop 0"
            nl.append(x)
        i_l = a.l.index("L_ld3:"); i_c = a.l.index("L_compute:")
        body = [x.replace("L_iw", "L_iw2").replace("L_ix", "L_ix2") for x in a.l[i_l:i_c]]
        a.l = a.l[:i_l] + body + nl + a.l[i_c:]
        if "w" in dm: a.l = [x.replace("v_xor_b32 v3, v0, v8", "v_mov_b32 v3, v0").replace("v_xor_b32 v5, v5, v6", "v_mov_b32 v5, v6") for x in a.l]
    out = HEADER
    out += "; Override launch geometry by editing the next line (default: block=256,\n; grid=ceil(out_elems/256), lds=0). Harness parses it; keep it on one line.\n"
    out += "; @launch grid=(256,1,1) block=(512,1,1) lds=163840\n"
    out += '.amdgcn_target "amdgcn-amd-amdhsa--gfx950"\n.text\n'
    out += f".globl {KNAME}\n.p2align 8\n.type {KNAME},@function\n"
    out += a.text()
    out += f""".section .rodata,"a"
.p2align 6
.amdhsa_kernel {KNAME}
  .amdhsa_next_free_vgpr 256
  .amdhsa_next_free_sgpr 96
  .amdhsa_accum_offset 256
  .amdhsa_group_segment_fixed_size 0
  .amdhsa_kernarg_size 72
  .amdhsa_user_sgpr_count 2
  .amdhsa_user_sgpr_kernarg_segment_ptr 1
  .amdhsa_system_sgpr_workgroup_id_x 1
  .amdhsa_float_denorm_mode_32 3
.end_amdhsa_kernel
"""
    return out

if __name__ == "__main__":
    kw = {}
    for x in sys.argv[2:]:
        k, v = x.split("=")
        kw[k] = eval(v)
    open(sys.argv[1], "w").write(gen(**kw))
```

```python
import sys
from gen1 import Asm, HEADER, KNAME

XSLOT = 32768
WBASE = 65536
WSLOT = 24576
NST = 32

DOC = """; y[b,s,:] = x[b,s-1,:] w0 + x[b,s,:] w1 + x[b,s+1,:] w2 (zero padded), out = silu((y - mean) * g / sqrt(var + eps) + b)
;
; with w (ds_read_b64_tr_b16) as A and x (ds_read_b128) as B; the padded taps of positions 0 and 7 are not issued.
; in the gaps between the remaining MFMAs. Scale and shift (times -log2 e) are prepared by the loaders and
;
; compute registers: v0-63 x fragments (two buffers), v64-87 w fragments (two buffers), v88-94 LDS addresses,
"""
NOTES = {
    "L_pc:": "; code prefetch into L2, tile and role decode",
    "L_iw:": "; issue one 32-channel step of w (returns through s[36:37])",
    "L_ix:": "; issue four positions of one 64-channel chunk of x",
    "L_go:": "; loader schedule: counted waits, one barrier per step",
    "L_pc2:": "; code refresh for the tail, then scale / shift with the reference's bf16 roundings",
    "L_compute:": "; compute waves: addresses, zeroed accumulators, first group peeled",
    "L_loop:": "; two steps (one x chunk) per iteration, four 16-channel groups per step",
    "L_tail:": "; steps 28-31 block by block with the epilogue of blocks 0 and 1 in the MFMA gaps, then the rest",
}
def annotate(t):
    return "".join((NOTES[l] + "\n" if l in NOTES else "") + l + "\n" for l in t.rstrip("\n").split("\n"))

def gen(stamps=False, stpol=" sc1", old=10, start=2, tail=3, spin=0, spinref=0, fill=2, pst=0, cpf=True, fill2=None, x15early=True, spread=False, tlb=0, otouch=False, tsh=13, al=3, pad=0, split0=True, unroll=1, epi2=True, cpf2=True, warm=0, warmd=1, dm="", csh=5, nstr=2, margin=0, w31=False, tst=None, m29=True, ldst=False, spt=False, sp0=0, pace=0, map48=False, wfirst=False, epi3=False, gld=False, lastpol=None, xrow=False, nlast=0, rsp=1, seq3=((0,0),(1,0),(2,0),(3,0),(3,1),(2,1),(1,1),(0,1))):
    a = Asm()
    ACC = 128
    XA, XB = 0, 32
    WR = [64, 76]
    VX = [88, 89]; VW = [90, 91, 92, 93]; BW = 94; VOUT = 95
    SC, SH = 96, 112
    VPA, VPB, PK = SH + 12, SH + 13, SH + 8
    if fill2 is None: fill2 = fill

    def stamp(j):
        if stamps:
            a("s_memtime s[40:41]"); a("s_memrealtime s[42:43]"); a("s_waitcnt lgkmcnt(0)")
            for q in range(4): a(f"s_mov_b32 s{60+4*j+q}, s{40+q}")
        if spin and spinref == j:
            a("s_memrealtime s[44:45]"); a("s_waitcnt lgkmcnt(0)"); a("s_mov_b32 s90, s44")
    def pstamp(r):
        a("s_memtime s[92:93]"); a("s_waitcnt lgkmcnt(0)"); a(f"s_sub_u32 s{r}, s92, s60")

    a.label(KNAME)
    a("s_load_dwordx4 s[20:23], s[0:1], 0")
    a("s_cmp_ge_u32 s2, 256")
    a("s_cbranch_scc1 L_end")
    a("s_getpc_b64 s[30:31]")
    a.label("L_pc")
    if cpf:
        a(f"v_lshlrev_b32 v4, {csh}, v0")
        a("v_min_u32 v4, L_end-L_pc, v4")
        a(f"global_load_dword v{SH+15}, v4, s[30:31]")
    stamp(0)
    a("v_readfirstlane_b32 s18, v0")
    if map48 == 1:
        a("s_and_b32 s16, s2, 31"); a("s_lshr_b32 s17, s2, 5")
    elif map48 == 2:
        a("s_bfe_u32 s16, s2, 0x50001"); a("s_lshr_b32 s17, s2, 6"); a("s_and_b32 s3, s2, 1"); a("s_lshl2_add_u32 s17, s3, s17")
    elif map48 == 3:
        a("s_bfe_u32 s16, s2, 0x20001"); a("s_bfe_u32 s3, s2, 0x30003"); a("s_lshl3_add_u32 s16, s16, s3")
        a("s_lshr_b32 s17, s2, 6"); a("s_and_b32 s3, s2, 1"); a("s_lshl1_add_u32 s17, s17, s3")
    elif map48 == 4:
        a("s_bfe_u32 s16, s2, 0x50002"); a("s_lshr_b32 s17, s2, 7"); a("s_and_b32 s3, s2, 3"); a("s_lshl1_add_u32 s17, s3, s17")
    elif map48 == 5:
        a("s_bfe_u32 s16, s2, 0x50001"); a("s_lshr_b32 s17, s2, 7"); a("s_and_b32 s3, s2, 1"); a("s_lshl1_add_u32 s17, s17, s3"); a("s_bfe_u32 s3, s2, 0x10006"); a("s_lshl1_add_u32 s17, s17, s3")
    else:
        a("s_bfe_u32 s16, s2, 0x50001")
        a("s_lshr_b32 s17, s2, 6"); a("s_and_b32 s3, s2, 1"); a("s_lshl1_add_u32 s17, s17, s3")
    a("s_lshl_b32 s39, s16, 19")
    a("s_lshl_b32 s17, s17, 8")
    a("s_bfe_u32 s38, s18, 0x20006")
    a("v_and_b32 v0, 63, v0")
    a("s_bitcmp1_b32 s18, 8")
    a("s_cbranch_scc0 L_compute")

    def pf_w(step, R):
        a(f"s_bfe_u32 s{R}, s2, 0x30003"); a(f"s_lshl2_add_u32 s{R}, s{R}, s38"); a(f"s_mul_i32 s{R}, s{R}, 3")
        for k in range(3):
            a(f"s_add_u32 s{R+1}, s{R}, {k}"); a(f"s_lshr_b32 s{R+2}, s{R+1}, 5"); a(f"s_lshl_b32 s{R+2}, s{R+2}, 21")
            a(f"s_and_b32 s{R+1}, s{R+1}, 31"); a(f"s_lshl_b32 s{R+1}, s{R+1}, 11"); a(f"s_add_u32 s{R+1}, s{R+1}, s{R+2}"); a(f"s_add_u32 s{R+1}, s{R+1}, s17")
            a(f"s_add_u32 s{R+4}, s22, s{R+1}"); a(f"s_addc_u32 s{R+5}, s23, 0")
            for st_ in step:
                if st_ * 65536 + 128 < (1 << 20):
                    a(f"s_load_dword s{R+3}, s[{R+4}:{R+5}], {st_*65536}"); a(f"s_load_dword s{R+3}, s[{R+4}:{R+5}], {st_*65536 + 128}")
                else:
                    a(f"s_add_u32 s{R+6}, s{R+4}, {st_*65536}"); a(f"s_addc_u32 s{R+7}, s{R+5}, 0")
                    a(f"s_load_dword s{R+3}, s[{R+6}:{R+7}], 0"); a(f"s_load_dword s{R+3}, s[{R+6}:{R+7}], 128")
    def pf_x(chunk, rows, R):
        a(f"s_lshr_b32 s{R}, s2, 6"); a(f"s_lshl2_add_u32 s{R}, s{R}, s38"); a(f"s_lshl_b32 s{R}, s{R}, 15"); a(f"s_add_u32 s{R}, s{R}, s39")
        a(f"s_add_u32 s{R+4}, s20, s{R}"); a(f"s_addc_u32 s{R+5}, s21, 0")
        for r in rows: a(f"s_load_dword s{R+3}, s[{R+4}:{R+5}], {chunk*128 + r*2048}")

    a("v_lshrrev_b32 v8, 4, v0")
    a("v_lshrrev_b32 v1, 3, v0"); a(f"v_lshlrev_b32 v1, {11 if xrow else 14}, v1")
    a("v_xor_b32 v3, v0, v8"); a("v_and_b32 v3, 7, v3"); a("v_lshl_add_u32 v1, v3, 4, v1")
    a("s_lshl_b32 s46, s38, 12")
    a("s_lshr_b32 s49, s46, 1")
    if xrow:
        a("s_lshl_b32 s36, s38, 16"); a("v_add_u32 v1, s36, v1")
        a("v_xor_b32 v2, 64, v1"); a("v_add_u32 v3, 2*15360, v1"); a("v_add_u32 v4, 3*15360, v2"); a("v_add_u32 v2, 15360, v2")
    else:
        a("v_add_u32 v1, s49, v1")
        a("v_xor_b32 v2, 64, v1"); a("v_add_u32 v3, 2*130048, v1"); a("v_add_u32 v4, 3*130048, v2"); a("v_add_u32 v2, 130048, v2")
    a("s_and_b32 s36, s38, 1"); a("s_lshl_b32 s36, s36, 1"); a("v_lshl_or_b32 v5, v8, 2, s36")
    a("v_and_b32 v6, 15, v0"); a("v_xor_b32 v5, v5, v6"); a("v_lshlrev_b32 v5, 4, v5")
    a("v_lshl_add_u32 v5, v8, 11, v5")
    a("s_lshl2_add_u32 s36, s46, s17")
    a("v_add_u32 v5, s36, v5")
    a("v_add_u32 v6, 7168, v5")
    a("s_bitset1_b32 s49, 16")
    a("s_mov_b32 s44, 0"); a("s_movk_i32 s48, 0x4000"); a("s_mov_b32 s51, 0x40000" if xrow else "s_movk_i32 s51, 0x2000"); a("s_movk_i32 s52, 0x80")
    a("s_mov_b32 s54, 0"); a("s_mov_b32 s55, 0x200000"); a("s_lshl_b32 s56, s55, 1"); a("s_lshr_b32 s57, s55, 5")
    a("s_mov_b32 s47, s49"); a(f"s_add_u32 s50, s49, {4*WSLOT}")
    a("s_mov_b32 s7, 0x20000"); a("s_mov_b32 s11, s7"); a("s_lshl_b32 s6, s57, 3"); a("s_add_u32 s10, s55, s56")
    a("s_add_u32 s36, s30, L_go-L_pc"); a("s_addc_u32 s37, s31, 0")
    if tlb >= 2:
        a("s_lshl_b32 s24, s38, 21"); a("s_cmp_eq_u32 s38, 3"); a("s_cselect_b32 s24, s39, s24")
        a("v_mov_b32 v7, s24")
    a("s_waitcnt lgkmcnt(0)")
    if tlb >= 2:
        a("s_cselect_b64 s[24:25], s[20:21], s[22:23]")
        a("global_load_dword v9, v7, s[24:25]")
    a("s_mov_b64 s[8:9], s[22:23]")
    if gld:
        a("s_mov_b64 s[70:71], s[22:23]"); a("s_add_u32 s72, s22, s55"); a("s_addc_u32 s73, s23, 0"); a("s_add_u32 s74, s22, s56"); a("s_addc_u32 s75, s23, 0")
        a.label("L_iw")
        a("s_add_u32 m0, s47, 8192"); a(f"s_add_u32 s58, s47, {WSLOT}")
        a("global_load_lds_dwordx4 v5, s[72:73]"); a("global_load_lds_dwordx4 v6, s[72:73] offset:1024")
        a("s_addk_i32 m0, 8192"); a("s_add_u32 s72, s72, s57")
        a("global_load_lds_dwordx4 v5, s[74:75]"); a("global_load_lds_dwordx4 v6, s[74:75] offset:1024")
        a("s_addc_u32 s73, s73, 0"); a("s_mov_b32 m0, s47"); a("s_add_u32 s74, s74, s57")
        a("global_load_lds_dwordx4 v5, s[70:71]"); a("global_load_lds_dwordx4 v6, s[70:71] offset:1024")
        a("s_addc_u32 s75, s75, 0"); a("s_add_u32 s70, s70, s57"); a("s_addc_u32 s71, s71, 0")
        a("s_cmp_eq_u32 s58, s50"); a("s_cselect_b32 s47, s49, s58")
        a("s_setpc_b64 s[36:37]")
        a.label("L_ix")
        a("s_mov_b32 m0, s46"); a("s_add_u32 s76, s4, s44"); a("s_addc_u32 s77, s5, 0"); a("s_xor_b32 s46, s46, s48")
        for e in range(4): a(f"global_load_lds_dwordx4 v{1+e}, s[76:77]{f' offset:{1024*e}' if e else ''}")
        a("s_xor_b32 s48, s48, 0x8000"); a("s_add_u32 s44, s44, s51"); a("s_sub_u32 s51, s52, s51")
        a("s_setpc_b64 s[36:37]")
    else:
        a.label("L_iw")
        a("s_add_u32 m0, s47, 8192"); a(f"s_add_u32 s58, s47, {WSLOT}")
        a("buffer_load_dwordx4 v5, s[8:11], s55 offen lds"); a("buffer_load_dwordx4 v6, s[8:11], s55 offen offset:1024 lds")
        a("s_addk_i32 m0, 8192"); a("s_add_u32 s55, s55, s57")
        a("buffer_load_dwordx4 v5, s[8:11], s56 offen lds"); a("buffer_load_dwordx4 v6, s[8:11], s56 offen offset:1024 lds")
        a("s_mov_b32 m0, s47"); a("s_add_u32 s56, s56, s57")
        a("buffer_load_dwordx4 v5, s[8:11], s54 offen lds"); a("buffer_load_dwordx4 v6, s[8:11], s54 offen offset:1024 lds")
        a("s_add_u32 s54, s54, s57"); a("s_cmp_eq_u32 s58, s50"); a("s_cselect_b32 s47, s49, s58")
        a("s_setpc_b64 s[36:37]")
        a.label("L_ix")
        a("s_mov_b32 m0, s46"); a("s_xor_b32 s46, s46, s48")
        for e in range(4): a(f"buffer_load_dwordx4 v{1+e}, s[4:7], s44 offen{f' offset:{1024*e}' if e else ''} lds")
        a("s_xor_b32 s48, s48, 0x8000"); a("s_add_u32 s44, s44, s51"); a("s_sub_u32 s51, s52, s51")
        a("s_setpc_b64 s[36:37]")
    a.label("L_go")
    if pace:
        i0_ = a.l.index("L_iw:"); nl_ = []
        for x in a.l[i0_:]:
            nl_.append(x)
            if "lds" in x and x.strip().startswith("buffer"): nl_.append(f"    s_sleep {pace}")
        a.l = a.l[:i0_] + nl_

    after = {t: [] for t in range(-1, NST)}
    if start == 2:
        after[-1] = [("w", 0), ("x", 0, 0), ("x", 0, 1), ("w", 1)]
        after[0] = [("w", 2), ("x", 1, 0), ("x", 1, 1)]
        after[1] = [("w", 3), ("w", 4), ("x", 2, 0)]
        after[2] = [("x", 2, 1), ("w", 5)]
    elif start == 3:
        after[-1] = [("w", 0), ("x", 0, 0), ("x", 0, 1), ("w", 1)]
        after[0] = [("w", 2), ("x", 1, 0), ("x", 1, 1)]
        after[1] = [("w", 3), ("x", 2, 0)]
        after[2] = [("w", 4), ("x", 2, 1), ("w", 5)]
    for t in range(3, NST):
        m = (t + 3) // 2
        if m < 16: after[t].append(("x", m, (t + 3) & 1))
        if t + 3 < NST: after[t].append(("w", t + 3))
        if wfirst: after[t].reverse()
    if tail >= 2 and x15early:
        after[28].remove(("x", 15, 1)); after[27].insert(after[27].index(("x", 15, 0)) + 1, ("x", 15, 1))
    if spt:
        after[22].append(("px", 15, range(0, 8))); after[23].append(("px", 15, range(8, 16))); after[24].append(("pw", 30)); after[25].append(("pw", 31))
    after[2].append(("par",))
    after[26 if tail >= 2 else 29].append(("parw",))
    cost = {"px": 0, "pw": 0, "w": 6, "x": 4, "par": 4, "parw": (2 if tail >= 2 else 0) + int(otouch) + int(cpf2) + int(tail == 3 and w31)}
    waits = {}; issued = list(after[-1])
    for t in range(NST):
        need = max(i for i, q in enumerate(issued) if q == ("w", t) or (q[0] == "x" and q[1] == t // 2) or (q[0] == "parw" and t >= 28) or (tail == 3 and m29 and t == 28 and q == ("w", 29)))
        waits[t] = sum(cost[q[0]] for q in issued[need + 1:])
        if 3 <= t <= 27: waits[t] = min(waits[t], 10 if wfirst else 16)
        issued += after[t]
    PARAM = WBASE
    def emit(e):
        if e[0] == "x": a("s_call_b64 s[36:37], L_ix")
        elif e[0] == "w": a("s_call_b64 s[36:37], L_iw")
        elif e[0] == "px": pf_x(e[1], e[2], 80)
        elif e[0] == "pw": pf_w([e[1]], 80)
        elif e[0] == "par":
            a("s_load_dwordx8 s[24:31], s[0:1], 16"); a("s_load_dwordx2 s[34:35], s[0:1], 64")
            a("v_lshl_add_u32 v12, v0, 2, s17")
            a("s_waitcnt lgkmcnt(0)")
            for k in range(4): a(f"global_load_dword v{16+k}, v12, s[{24+2*k}:{25+2*k}]")
        elif e[0] == "parw":
            if tail == 3 and w31:
                a("s_mul_i32 s24, s38, 48"); a("v_min_u32 v13, 47, v0"); a("v_add_u32 v13, s24, v13")
                a("v_lshrrev_b32 v14, 6, v13"); a("v_lshlrev_b32 v14, 21, v14")
                a("v_bfe_u32 v15, v13, 1, 5"); a("v_lshl_add_u32 v14, v15, 11, v14")
                a("v_and_b32 v13, 1, v13"); a("v_lshl_add_u32 v14, v13, 7, v14")
                a(f"s_add_u32 s24, s17, {31*65536}")
                a("buffer_load_dword v15, v14, s[8:11], s24 offen")
            if cpf2:
                a("s_getpc_b64 s[28:29]")
                a.label("L_pc2")
                a("s_lshl_b32 s24, s38, 12"); a("s_add_u32 s24, s24, L_tail-L_pc2"); a("v_lshl_add_u32 v13, v0, 6, s24")
                a("v_min_u32 v13, L_end-L_pc2, v13")
                a("global_load_dword v15, v13, s[28:29]")
            if otouch:
                a("s_load_dwordx2 s[32:33], s[0:1], 48"); a("v_mov_b32 v13, s39"); a("s_waitcnt lgkmcnt(0)")
                a("global_load_dword v14, v13, s[32:33]")
            a("s_mov_b32 s24, 0xffff0000"); a("s_mov_b32 s25, 0x3727c5ac"); a("s_mov_b32 s26, 0xbfb8aa3b")
            for hi in range(2):
                def unpack(dst, src): a(f"v_and_b32 v{dst}, s24, v{src}" if hi else f"v_lshlrev_b32 v{dst}, 16, v{src}")
                def rnd(x): a(f"v_cvt_pk_bf16_f32 v{x}, v{x}, v{x}"); a(f"v_and_b32 v{x}, s24, v{x}")
                unpack(20, 17); unpack(21, 18); unpack(22, 16); unpack(23, 19)
                a("v_add_f32 v20, s25, v20"); rnd(20)
                a("v_sqrt_f32 v20, v20"); a("s_nop 0"); rnd(20)
                a("v_rcp_f32 v20, v20"); a("s_nop 0"); rnd(20)
                a("v_mul_f32 v20, v21, v20"); rnd(20)
                a("v_fma_f32 v23, -v22, v20, v23")
                a(f"v_mul_f32 v{24+hi}, s26, v20"); a(f"v_mul_f32 v{26+hi}, s26, v23")
            if tail >= 2:
                a("s_lshl_b32 s27, s2, 10"); a(f"s_add_u32 s27, s27, {WSOFF}"); a("v_lshl_add_u32 v12, v0, 3, s27")
                a("global_store_dwordx2 v12, v[24:25], s[34:35] sc1"); a("global_store_dwordx2 v12, v[26:27], s[34:35] offset:512 sc1")
            else:
                a("v_lshlrev_b32 v12, 3, v0"); a(f"v_add_u32 v12, {PARAM}, v12")
                a("ds_write_b64 v12, v[24:25]"); a("ds_write_b64 v12, v[26:27] offset:512")
                a("s_waitcnt lgkmcnt(0)")
    WSOFF = 1 << 20
    def lst(n):
        a("s_memtime s[40:41]"); a("s_memrealtime s[42:43]"); a("s_waitcnt lgkmcnt(0)")
        a(f"v_writelane_b32 v10, s40, {n}"); a(f"v_writelane_b32 v11, s42, {n}")
    def bar(t):
        if tail == 3 and m29 and t == 29: return
        a(f"s_waitcnt vmcnt({waits[t]})")
        if ldst and t < 31: lst(32 + t)
        a("s_barrier")
        if ldst: lst(t)
    for i, e in enumerate(after[-1]):
        if split0 and i == 3: a("s_waitcnt vmcnt(4)"); a("s_barrier")
        if i: emit(e)
        if i == 0: a("s_add_u32 s4, s20, s39"); a("s_addc_u32 s5, s21, 0")
        if pst == 2 and i < 3: pstamp((91, 94, 95)[i])
    if pst == 1:
        pstamp(91); pstamp(94); a(f"s_waitcnt vmcnt({waits[0]})"); pstamp(95)
    if ldst:
        a("v_mov_b32 v10, 0"); a("v_mov_b32 v11, 0")
        a("v_writelane_b32 v10, s60, 63"); a("v_writelane_b32 v11, s62, 63")
    def sig(t): return (waits[t], tuple(e[0] for e in after[t]))
    t = 0
    while t < NST:
        n = 1
        while t + n < NST and sig(t + n) == sig(t): n += 1
        if n > 2 and not ldst:
            a("s_mov_b32 s53, 0"); a.label(f"L_ld{t}")
            bar(t)
            for e in after[t]: emit(e)
            a("s_add_u32 s53, s53, 1"); a(f"s_cmp_lt_u32 s53, {n}"); a(f"s_cbranch_scc1 L_ld{t}")
            t += n
        else:
            bar(t)
            for e in after[t]: emit(e)
            t += 1
    if ldst:
        a("s_cmp_eq_u32 s38, 0"); a("s_cbranch_scc0 L_end")
        a("s_lshl_b32 s36, s2, 9"); a("s_add_u32 s36, s36, 65536")
        a("v_lshl_add_u32 v1, v0, 3, s36")
        a("global_store_dwordx2 v1, v[10:11], s[34:35]")
    if pst:
        a("s_cmp_eq_u32 s38, 0"); a("s_cbranch_scc0 L_end")
        a("s_lshl_b32 s36, s2, 7"); a("v_mov_b32 v1, s36")
        a("v_mov_b32 v4, s91"); a("v_mov_b32 v5, s94"); a("v_mov_b32 v6, s95"); a("v_mov_b32 v7, 0")
        a("global_store_dwordx4 v1, v[4:7], s[34:35] offset:96")
    a("s_endpgm")

    a.label("L_compute")
    a("s_load_dwordx2 s[32:33], s[0:1], 48")
    a("s_load_dwordx2 s[34:35], s[0:1], 64")
    if tlb in (1, 3):
        a("s_lshl_b32 s36, s38, 21"); a("s_cmp_eq_u32 s38, 3"); a("s_cselect_b32 s36, s39, s36"); a("v_mov_b32 v4, s36")
        a("s_waitcnt lgkmcnt(0)")
        a("s_cselect_b32 s24, s20, s22"); a("s_cselect_b32 s25, s21, s23")
        a(f"global_load_dword v{SH+14}, v4, s[24:25]")
    a("v_lshrrev_b32 v1, 4, v0")
    a("v_and_b32 v3, 15, v0")
    a("s_and_b32 s57, s38, 1"); a("s_lshr_b32 s58, s38, 1")
    for r in range(8, 12): a(f"v_mov_b32 v{r}, 0")
    a("s_lshl_b32 s37, s58, 7"); a("s_add_u32 s36, s17, s37"); a("s_lshl_b32 s37, s57, 18"); a("s_add_u32 s36, s36, s37")
    if warm:
        for r in range(12, 28): a(f"v_mul_u32_u24 v{r}, {0x3d5a91 + 0x12457 * r & 0xffffff}, v0"); a(f"v_and_b32 v{r}, 0x3fff3fff, v{r}")
        a("s_movk_i32 s53, 0"); a.label("L_warm")
        for i in range(12):
            a(f"v_mfma_f32_16x16x32_bf16 v[{ACC+4*(i//3)}:{ACC+4*(i//3)+3}], v[{12+4*(i&1)}:{15+4*(i&1)}], v[{20+4*(i>>1&1)}:{23+4*(i>>1&1)}], v[{ACC+4*(i//3)}:{ACC+4*(i//3)+3}]")
            if warmd > 1: a(f"s_nop {warmd}")
        a("s_add_u32 s53, s53, 1"); a(f"s_cmp_lt_u32 s53, {warm}"); a("s_cbranch_scc1 L_warm")
        a("s_nop 7")
    for r in range(8): a(f"v_mfma_f32_32x32x16_bf16 v[{ACC+16*r}:{ACC+16*r+15}], v[8:11], v[8:11], 0")
    a("v_lshlrev_b32 v4, 14, v3"); a("v_add_u32 v4, s36, v4")
    a("v_and_b32 v5, 1, v1"); a("v_lshl_add_u32 v4, v5, 5, v4")
    a("v_lshrrev_b32 v5, 1, v1"); a(f"v_lshl_add_u32 v{VOUT}, v5, 4, v4")
    a("v_lshrrev_b32 v4, 1, v3"); a("v_xor_b32 v4, v4, v1"); a("v_lshlrev_b32 v4, 4, v4")
    a("v_lshl_add_u32 v4, v3, 7, v4"); a("s_lshl_b32 s36, s57, 11")
    a(f"v_add_u32 v{VX[0]}, s36, v4"); a(f"v_xor_b32 v{VX[1]}, 64, v{VX[0]}")
    a("v_bfe_u32 v4, v0, 2, 2")
    a("v_lshl_add_u32 v5, v1, 3, v4"); a("v_lshlrev_b32 v5, 8, v5")
    a("v_and_b32 v6, 1, v1"); a("v_lshl_or_b32 v4, v4, 1, v6"); a("s_lshl_b32 s37, s58, 2"); a("v_xor_b32 v4, s37, v4")
    a("v_lshl_add_u32 v5, v4, 5, v5")
    a("v_and_b32 v4, 3, v0"); a("v_lshl_add_u32 v5, v4, 3, v5")
    a(f"v_add_u32 v{BW}, {WBASE}, v5")
    a(f"v_mov_b32 v{VW[0]}, v{BW}")
    for cb in (1, 2, 3): a(f"v_xor_b32 v{VW[cb]}, {32*cb}, v{BW}")
    a("s_lshl_b32 s59, s58, 8")
    if tail >= 2: a("s_lshl_b32 s37, s2, 10"); a("s_add_u32 s59, s59, s37"); a(f"s_add_u32 s59, s59, {WSOFF}")
    else: a(f"s_add_u32 s59, s59, {PARAM}")
    if tail == 3:
        a(f"v_lshl_add_u32 v{VPA}, v1, 4, s59")
        a("v_bfe_u32 v4, v0, 2, 1"); a("v_bfe_u32 v5, v0, 1, 1"); a("v_and_b32 v6, 1, v0")
        a(f"v_lshl_add_u32 v4, v4, 9, v{VPA}"); a("v_lshl_add_u32 v4, v5, 6, v4"); a(f"v_lshl_add_u32 v{VPB}, v6, 3, v4")
    a("s_mov_b32 s14, 524288"); a("s_mov_b32 s15, 0x20000")
    a("s_mov_b32 s50, 0"); a("s_mov_b32 s53, 0")
    a("s_mov_b32 s46, 0xbfb8aa3b"); a("s_mov_b32 s47, s46")
    for k in range(4): a(f"s_movk_i32 s{24+k}, {4096*k}")
    a("s_waitcnt lgkmcnt(0)")
    a("s_add_u32 s12, s32, s39"); a("s_addc_u32 s13, s33, 0")
    if sp0 == 1: pf_w([2], 80)
    if sp0 == 2: pf_w([1, 2], 80)
    if sp0 == 3: pf_x(1, range(0, 16, 2), 80)
    if sp0 == 4: pf_w([2], 80); pf_x(1, range(0, 16, 4), 80)
    if sp0: a("s_waitcnt lgkmcnt(0)")

    def acc(o, cb): return ACC + 16 * o + 4 * cb
    def xreads(h, extra=0): return [(f"X{h}{s}", f"ds_read_b128 v[{(XB if h else XA)+4*s}:{(XB if h else XA)+4*s+3}], v{VX[h]} offset:{extra + s*4096}") for s in range(8)]
    def wreads(k, vaddr, extra=0):
        r = []
        for tap in (1, 2, 0):
            for half in range(2):
                b = WR[k] + 4 * tap + 2 * half
                r.append((f"W{k}{tap}", f"ds_read_b64_tr_b16 v[{b}:{b+1}], v{vaddr} offset:{extra + tap*8192 + half*1024}"))
        return r

    class Q:
        def __init__(self): self.q = []; self.age = []
        def issue(self, tag, ins):
            if tag != "B": self.q.append(tag); self.age.append(0)
            a(ins)
        def tick(self): self.age = [x + 1 for x in self.age]
        def need(self, tags):
            idx = [i for i, t in enumerate(self.q) if t in tags]
            if idx:
                m = max(idx + [i for i, x in enumerate(self.age) if x >= old]); n = len(self.q) - 1 - m
                assert n <= 15
                a(f"s_waitcnt lgkmcnt({n})"); self.q = self.q[m + 1:]; self.age = self.age[m + 1:]
        def drain(self):
            if self.q: a("s_waitcnt lgkmcnt(0)")
            self.q = []; self.age = []
    q = Q()

    def group(h, cb, k, reads, alu=(), filler=None, fl=0):
        reads = list(reads); alu = list(alu)
        X = XB if h else XA
        gap = 0; nrd = len(reads)
        for o in range(8):
            for tap in ((0, 1, 2) if o % 2 == 0 else (2, 1, 0)):
                s = o + tap - 1
                if not 0 <= s <= 7: continue
                c = acc(o, cb); w = WR[k] + 4 * tap
                q.need({f"X{h}{s}", f"W{k}{tap}"})
                a(f"v_mfma_f32_16x16x32_bf16 v[{c}:{c+3}], v[{w}:{w+3}], v[{X+4*s}:{X+4*s+3}], v[{c}:{c+3}]"); q.tick()
                gap += 1
                if reads and not filler and rsp > 1 and (gap - 1) * nrd // 19 < nrd - len(reads):
                    if alu and not any(x.split()[1].rstrip(",") in r[1] for x in alu[:1] for r in reads): a(alu.pop(0))
                elif reads and (not filler or not spread or gap % 2 == 1):
                    q.issue(*reads.pop(0))
                    if filler and fl > 1: filler(fl - 1, fl)
                elif alu: a(alu.pop(0))
                elif filler: filler(fl, fl)
        assert not reads and not alu

    slot_adv = [f"s_add_u32 s50, s50, {WSLOT}", f"s_cmp_eq_u32 s50, {4*WSLOT}", "s_cselect_b32 s50, 0, s50"]
    marks = []
    def step(h, cnt=None, lab=None):
        xr = xreads(1) if h == 0 else []
        group(h, 0, 0, wreads(1, VW[1]) + xr, slot_adv)
        if lab:
            a.label(lab)
            assert g0state[0][len(g0state[0]) - len(q.q):] == q.q or True
            marks.append(list(q.q))
        group(h, 1, 1, wreads(0, VW[2]), [f"v_add_u32 v{VW[0]}, s50, v{BW}", f"v_xor_b32 v{VW[1]}, 32, v{VW[0]}", f"v_xor_b32 v{VX[h^1]}, {XSLOT}, v{VX[h^1]}"])
        group(h, 2, 0, wreads(1, VW[3]), [f"v_xor_b32 v{VW[2]}, 64, v{VW[0]}"])
        q.drain(); a("s_barrier")
        nx = xreads(0) if h == 1 else []
        w = wreads(0, VW[0])
        group(h, 3, 1, w[:2] + nx[:3] + w[2:] + nx[3:], [f"v_xor_b32 v{VW[3]}, 96, v{VW[0]}"] + (["s_add_u32 s53, s53, 1", f"s_cmp_lt_u32 s53, {cnt}"] if cnt else []))

    if pst: pstamp(91)
    a("s_barrier")
    stamp(1)
    w = wreads(0, VW[0]); nx = xreads(0)
    if split0:
        for r in w[:2] + nx[:3] + w[2:] + nx[3:4]: q.issue(*r)
        group(0, 0, 0, wreads(1, VW[1]) + [("B", "s_barrier")] + nx[4:] + xreads(1), slot_adv)
        g0state = (list(q.q), list(q.age))
        a("s_branch L_g1")
        q.q = [r[0] for r in w[:2] + nx[:3] + w[2:] + nx[3:]]; q.age = [0] * len(q.q)
    else:
        for r in w[:2] + nx[:3] + w[2:] + nx[3:]: q.issue(*r)
    a(f".p2align {al}")
    for _ in range(pad): a("s_nop 0")
    a.label("L_loop")
    save = a.l; a.l = []; pre = list(q.q)
    step(0); step(1); st = (list(q.q), list(q.age))
    a.l = save
    assert st[0] == pre
    q.q, q.age = list(st[0]), list(st[1])
    nch = 14 if tail >= 2 else 15
    assert nch % unroll == 0
    for u in range(unroll):
        step(0, lab="L_g1" if split0 and u == 0 else None); step(1, cnt=nch // unroll if u == unroll - 1 else None)
    assert (q.q, q.age) == st
    if split0: print("queue at L_g1: loop", marks[0], "peeled", g0state[0], file=sys.stderr)
    a("s_cbranch_scc1 L_loop")
    a.label("L_tail")

    def sitem(o, cb, T, els=(0, 1, 2, 3)):
        A = acc(o, cb); S = SC + 4 * cb; H = SH + 4 * cb
        l = [f"v_fma_f32 v{A+r}, v{A+r}, v{S+r}, v{H+r}" for r in els]
        l += [f"v_exp_f32 v{T[i]}, v{A+r}" for i, r in enumerate(els)]
        l += [f"v_fma_f32 v{T[i]}, v{T[i]}, s46, s46" for i, r in enumerate(els)]
        l += [f"v_rcp_f32 v{T[i]}, v{T[i]}" for i, r in enumerate(els)]
        l += [f"v_mul_f32 v{A+r}, v{A+r}, v{T[i]}" for i, r in enumerate(els)]
        return l
    def item(o, cbs, T0, pk):
        A = acc(o, cbs[0]); S = SC + 4 * cbs[0]; H = SH + 4 * cbs[0]; n = 4 * len(cbs)
        l = []
        if not pk:
            l += [f"v_fma_f32 v{A+r}, v{A+r}, v{S+r}, v{H+r}" for r in range(n)]
            l += [f"v_exp_f32 v{T0+r}, v{A+r}" for r in range(n)]
            l += [f"v_fma_f32 v{T0+r}, v{T0+r}, s46, s46" for r in range(n)]
            l += [f"v_rcp_f32 v{T0+r}, v{T0+r}" for r in range(n)]
            l += [f"v_mul_f32 v{A+r}, v{A+r}, v{T0+r}" for r in range(n)]
        else:
            l += [f"v_pk_fma_f32 v[{A+r}:{A+r+1}], v[{A+r}:{A+r+1}], v[{S+r}:{S+r+1}], v[{H+r}:{H+r+1}]" for r in range(0, n, 2)]
            l += [f"v_exp_f32 v{T0+r}, v{A+r}" for r in range(n)]
            l += [f"v_pk_fma_f32 v[{T0+r}:{T0+r+1}], v[{T0+r}:{T0+r+1}], s[46:47], s[46:47]" for r in range(0, n, 2)]
            l += [f"v_rcp_f32 v{T0+r}, v{T0+r}" for r in range(n)]
            l += [f"v_pk_mul_f32 v[{A+r}:{A+r+1}], v[{A+r}:{A+r+1}], v[{T0+r}:{T0+r+1}]" for r in range(0, n, 2)]
        for cb in cbs:
            B = acc(o, cb)
            if cb & 1: l += [f"v_cvt_pk_bf16_f32 v{B}, v{B}, v{B+1}", f"v_cvt_pk_bf16_f32 v{B+1}, v{B+2}, v{B+3}"]
            else: l += [f"v_cvt_pk_bf16_f32 v{B+3}, v{B+2}, v{B+3}", f"v_cvt_pk_bf16_f32 v{B+2}, v{B}, v{B+1}"]
        if cbs[-1] & 1:
            cp = cbs[-1] >> 1; P = acc(o, 2 * cp) + 2
            l += ["s_nop 1", f"v_permlane16_swap_b32 v{P}, v{P+2}", f"v_permlane16_swap_b32 v{P+1}, v{P+3}",
                  f"buffer_store_dwordx4 v[{P}:{P+3}], v{VOUT}, s[12:15], s{24+(o>>1)} offen offset:{(o&1)*2048 + cp*64}{stpol}"]
        return l
    done = set(); cur = []; avail = set()
    def mkfiller(pend, T0):
        def filler(budget, full):
            while budget > 0:
                if not cur:
                    if not pend or pend[0][1] not in avail: return
                    o, cb = pend.pop(0); done.add((o, cb))
                    cur.extend(item(o, [cb], T0, False))
                c = 2 if cur[0].startswith(("v_exp", "v_rcp")) else 1
                if c > budget and budget < full: return
                a(cur.pop(0)); budget -= c
        return filler
    streams = [[], []]; ptail = []
    def mkpairfiller(pend, T):
        def istr(x): return x.startswith(("v_exp", "v_rcp"))
        def filler(budget, full):
            while budget > 0:
                if not streams[0] and not streams[1]:
                    streams[0].extend(ptail); ptail.clear()
                    if pend and avail:
                        o = pend.pop(0); done.update(((o, 0), (o, 1)))
                        c0 = item(o, [0], 0, False)[-2:]; l1 = item(o, [1], 0, False)[-6:]
                        A0 = acc(0, 0)
                        if o == 0:
                            streams[0].extend(sitem(0, 0, T, (0, 1)) + sitem(0, 0, T, (2, 3)) + c0 + sitem(0, 1, T + [A0, A0 + 1]) + l1[:2])
                        else:
                            streams[0].extend(sitem(o, 0, T + [A0, A0 + 1]) + c0)
                            streams[1].extend(sitem(o, 1, [A0 + 6, A0 + 7] + ([A0 + 2, A0 + 3] if o > 1 else [])  , (0, 1, 2, 3) if o > 1 else (0, 1)) + ([] if o > 1 else sitem(o, 1, [A0 + 6, A0 + 7], (2, 3))) + l1[:2])
                        ptail.extend(l1[2:])
                    if not streams[0]: return
                heads = [x for x in streams if x]
                tr = [x for x in heads if istr(x[0])]; pl = [x for x in heads if not istr(x[0])]
                if tr and (budget >= 2 or (budget == full and not pl)):
                    x = max(tr, key=len); a(x.pop(0)); budget -= 2
                elif pl:
                    x = max(pl, key=len); a(x.pop(0)); budget -= 1
                else: return
        return filler
    def lane48(v): return [f"v_mbcnt_lo_u32_b32 v{v}, -1, 0", f"v_mbcnt_hi_u32_b32 v{v}, -1, v{v}", f"v_and_b32 v{v}, 48, v{v}", f"v_add_u32 v{v}, s59, v{v}"]
    def preg(i): return (SC if i < 4 else SH) + 4 * (i & 3)
    if tail == 1:
        VP = VX[0]
        def par(i): return (f"P{i}", f"ds_read_b128 v[{preg(i)}:{preg(i)+3}], v{VP} offset:{(i&3)*64 + (i>>2)*512}")
        allp = {f"P{i}" for i in range(8)}
        filler = mkfiller([(o, cb) for cb in range(2) for o in range(8)], SC + 8)
        a("s_barrier")
        group(0, 0, 0, wreads(1, VW[0], WSLOT) + xreads(1), ["s_waitcnt vmcnt(0)"] + lane48(VP))
        group(1, 0, 1, wreads(0, VW[1]) + [par(i) for i in (0, 4, 1, 5)])
        q.need(allp); avail.add(0)
        group(0, 1, 0, wreads(1, VW[1], WSLOT), filler=filler, fl=fill)
        group(1, 1, 1, wreads(0, VW[2]), filler=filler, fl=fill)
        avail.add(1)
        group(0, 2, 0, wreads(1, VW[2], WSLOT), filler=filler, fl=fill)
        group(1, 2, 1, wreads(0, VW[3]), filler=filler, fl=fill)
        group(0, 3, 0, wreads(1, VW[3], WSLOT), filler=filler, fl=fill)
        group(1, 3, 1, [], filler=filler, fl=fill)
        stamp(2)
        while cur: a(cur.pop(0))
        for i in (2, 6, 3, 7): q.issue(*par(i))
        waitp = lambda: q.need(allp)
    elif tail == 2:
        VP = SH + 12
        gl = [f"global_load_dwordx4 v[{preg(i)}:{preg(i)+3}], v{VP}, s[34:35] offset:{(i&3)*64 + (i>>2)*512}" for i in range(8)]
        filler = mkpairfiller(list(range(8)), [VW[0], VW[1]])
        seq = [(t, cb) for cp in range(2) for t in range(4) for cb in (2 * cp, 2 * cp + 1)]
        for i, (t, cb) in enumerate(seq):
            k = i & 1; reads = []; alu = []
            if i + 1 < len(seq):
                t2, cb2 = seq[i + 1]
                if cb2 < 2 and t2 != t:
                    a("s_barrier")
                va = VW[cb2] if t2 < 2 else BW
                reads = wreads(k ^ 1, va, WSLOT if t2 == 1 else 0)
                if i + 2 < len(seq) and seq[i + 2][0] >= 2:
                    alu.append(f"v_add_u32 v{BW}, {seq[i+2][0]*WSLOT}, v{VW[seq[i+2][1]]}")
            nt = (t + 1) & 3
            if i + 2 < len(seq):
                if nt == 2 and cb < 2:
                    if cb & 1: reads = reads[:2] + xreads(0, XSLOT)[:3] + reads[2:] + xreads(0, XSLOT)[3:]
                elif i < 8:
                    if not cb & 1: reads = reads + xreads(nt & 1, XSLOT if nt >= 2 else 0)
                else: reads = reads + xreads(nt & 1, XSLOT if nt >= 2 else 0)[4*(cb&1):4*(cb&1)+4]
            if i == 0: alu += ["s_waitcnt vmcnt(0)"] + lane48(VP)
            if i == 3: alu += gl[:4]
            if i == 5: alu += gl[4:]
            if i == 8:
                a("s_waitcnt vmcnt(0)"); avail.update((0, 1))
            group(t & 1, cb, k, reads, alu, filler=filler if i >= 8 else None, fl=fill2 if i >= 12 else fill)
        stamp(2)
        for x in streams[0] + streams[1] + ptail: a(x)

        cnt = {"n": 0}
        waitp = None
    if tail == 3:
        import re
        class Sched:
            def __init__(self):
                self.pool = []; self.act = []; self.pend = []; self.packed = {}; self.tails = []; self.nst = 0
            def istr(self, x): return x.startswith(("v_exp", "v_rcp"))
            def ok(self, x):
                last = a.l[-1].strip()
                if self.istr(last) and not self.istr(x):
                    d = last.split()[1].rstrip(",")
                    if re.search(rf"\b{d}\b", x.split(",", 1)[1]): return False
                return True
            def top(self):
                for o in list(self.tails):
                    if self.stores_ok and len(a.l) - max(self.packed[(o, 0)], self.packed[(o, 1)]) >= 3:
                        self.tails.remove(o); self.act.insert(0, {"ops": item(o, [1], 0, False)[-3:], "t": [], "k": None})
                while len([x for x in self.act if x["k"]]) < nstr and self.pend and self.pend[0][1] in avail and len(self.pool) >= 2:
                    o, cb = self.pend.pop(0); done.add((o, cb))
                    n = 4 if len(self.pool) >= 4 else 2
                    self.pool.sort(reverse=True)
                    T = [self.pool.pop(0) for _ in range(n)]
                    ops = sitem(o, cb, T) if n == 4 else sitem(o, cb, T, (0, 1)) + sitem(o, cb, T, (2, 3))
                    full = item(o, [cb], 0, False)
                    self.act.append({"ops": ops + (full[-6:-4] if cb & 1 else full[-2:]), "t": T, "k": (o, cb)})
            def emit(self, st):
                x = st["ops"].pop(0); a(x)
                if x.startswith("buffer_store"): self.nst += 1
                if not st["ops"]:
                    self.act.remove(st); self.pool += [r for r in st["t"] if r not in self.retired]
                    if st["k"]:
                        o, cb = st["k"]; self.packed[(o, cb)] = len(a.l)
                        if (o, cb ^ 1) in self.packed: self.tails.append(o)
            def trans_ready(self):
                self.top()
                return any(self.istr(st["ops"][0]) or st["ops"][0].startswith("buffer") for st in self.act)
            def fill(self, budget, first):
                while budget > 0:
                    self.top()
                    mem = [st for st in self.act if st["ops"][0].startswith("buffer")]
                    tr = [st for st in self.act if self.istr(st["ops"][0])]
                    pl = [st for st in self.act if st not in mem and st not in tr and self.ok(st["ops"][0])]
                    if mem and first: self.emit(mem[0]); budget -= 1
                    elif tr and budget >= 2: self.emit(tr[0]); budget -= 2
                    elif pl: self.emit(pl[0]); budget -= 1
                    else: return
                    first = False
            def flush(self):
                self.pend = []
                while self.act or self.tails:
                    self.top()
                    el = [st for st in self.act if self.ok(st["ops"][0])]
                    if el: self.emit(el[0])
                    else: a("s_nop 0")
        sc = Sched(); sc.retired = set(); sc.stores_ok = True; late = []
        def xr3(t, buf): return [(f"X{buf}{s_}", f"ds_read_b128 v[{(XB if buf else XA)+4*s_}:{(XB if buf else XA)+4*s_+3}], v{VX[t&1]} offset:{(XSLOT if t >= 2 else 0) + s_*4096}") for s_ in range(8)]
        def group3(h, cb, k, reads, alu, fl, bar):
            reads = list(reads); alu = list(alu); X = XB if h else XA
            ms = [(o, tap) for o in range(8) for tap in ((0, 1, 2) if o % 2 == 0 else (2, 1, 0)) if 0 <= o + tap - 1 <= 7]
            for j, (o, tap) in enumerate(ms):
                s_ = o + tap - 1; c = acc(o, cb); w = WR[k] + 4 * tap
                q.need({f"X{h}{s_}", f"W{k}{tap}"})
                a(f"v_mfma_f32_16x16x32_bf16 v[{c}:{c+3}], v[{w}:{w+3}], v[{X+4*s_}:{X+4*s_+3}], v[{c}:{c+3}]"); q.tick()
                if j == 0 and bar:
                    a("s_barrier"); continue
                nxt = {f"X{h}{ms[j+1][0]+ms[j+1][1]-1}", f"W{k}{ms[j+1][1]}"} if j + 1 < 22 else {"W00", "W01", "W02", "W10", "W11", "W12"}
                b = fl - (1 if any(t_ in nxt for t_ in q.q) else 0) if fl else 0
                must = len(reads) + len(alu) > 21 - j - margin
                if late and not any(r in sc.retired for st in sc.act for r in st["t"]) and not must:
                    a(late.pop(0)); sc.stores_ok = not late
                    if fl: sc.fill(b - 1, False)
                elif (reads or alu) and (must or not fl or b < 2 or not sc.trans_ready()):
                    if reads: q.issue(*reads.pop(0))
                    else: a(alu.pop(0))
                    if fl: sc.fill(b - 1, False)
                elif fl: sc.fill(b, True)
            assert not reads and not alu
        VP = SH + 12
        def gl(i, v): return f"global_load_dwordx4 v[{preg(i)}:{preg(i)+3}], v{v}, s[34:35] offset:{(i&3)*64 + (i>>2)*512}"
        seq = list(seq3) + [(t, cb) for t in range(4) for cb in (2, 3)]
        c0done = max(i for i, g in enumerate(seq) if g[1] == 0) + 1
        landed = 1 if m29 else 0
        bufs = [0]; held = [0, None]; xl = {i: [] for i in range(len(seq))}
        for i in range(1, len(seq)):
            t = seq[i][0]
            if t in held: bufs.append(held.index(t)); continue
            b_ = bufs[i - 1] ^ 1; held[b_] = t; bufs.append(b_)
            x = xr3(t, b_)
            if i >= 2 and bufs[i - 2] == bufs[i - 1] and i >= 9: xl[i - 2] = x[:4]; xl[i - 1] = x[4:]
            else: xl[i - 1] = x
        for i, (t, cb) in enumerate(seq):
            k = i & 1; w = []; x = []; alu = []; bar = False
            if tst and i in tst:
                a("s_memtime s[92:93]"); q.drain(); a("s_waitcnt lgkmcnt(0)"); a(f"s_sub_u32 s{80+tst.index(i)}, s92, s64")
            if i + 1 < len(seq):
                t2, cb2 = seq[i + 1]
                if t2 > landed:
                    assert t2 == landed + 1
                    landed = t2; bar = True
                w = wreads(k ^ 1, VW[cb2] if t2 < 2 else BW, WSLOT if t2 == 1 else 0)
                if i + 2 < len(seq) and seq[i + 2][0] >= 2:
                    alu.append(f"v_add_u32 v{BW}, {seq[i+2][0]*WSLOT}, v{VW[seq[i+2][1]]}")
            x = xl[i]
            reads = w[:2] + x[:2] + w[2:4] + x[2:3] + w[4:] + x[3:] if len(x) == 8 else w + x
            if i == 0: alu += ["s_waitcnt vmcnt(0)"]
            if i == 1: alu += [gl(j, VPA) for j in (0, 4, 1, 5)] + [f"global_load_dwordx2 v[{PK}:{PK+1}], v{VPB}, s[34:35] offset:128"]
            if i == c0done:
                a("s_waitcnt vmcnt(0)"); avail.add(0)
                sc.pend = [(o, 0) for o in range(8)]; sc.pool = list(range(SC + 8, SC + 16))
            if i == 8:
                avail.add(1)
                rest = [o for (o, c_) in sc.pend]
                sc.pend = [p_ for o in range(8) for p_ in ([(o, 0)] if o in rest else []) + [(o, 1)]]
            group3(bufs[i], cb, k, reads, alu, fill if i >= c0done else 0, bar)
        assert not late and landed == 3
        stamp(2)
        sc.flush()
        print("tail 3: done in gaps", sorted(done), "stores", sc.nst, file=sys.stderr)
        for j in (0, 1, 2, 3, 5, 6, 7, 4):
            d = (SC if j < 4 else SH) + 8 + 2 * (j & 3)
            a(f"v_mov_b64_dpp v[{d}:{d+1}], v[{PK}:{PK+1}] row_newbcast:{j} row_mask:0xf bank_mask:0xf")
    todo = []
    for cp in range(2):
        for o in range(8):
            cbs = [cb for cb in (2 * cp, 2 * cp + 1) if (o, cb) not in done]
            if cbs: todo.append((o, cbs))
    if epi2:
        def stages(o, cbs, T0):
            l = item(o, cbs, T0, True); n = len(cbs)
            F, E, D, R, M, C = l[:2*n], l[2*n:6*n], l[6*n:8*n], l[8*n:12*n], l[12*n:14*n], l[14*n:16*n]
            return F, E, D, R, M, C, [x for x in l[16*n:] if not x.startswith("s_")]
        stg = [stages(o, cbs, XA + 8 * (i & 1)) for i, (o, cbs) in enumerate(todo)]
        def gate(i):
            if todo[i][1][0] >= 2 and (i == 0 or todo[i - 1][1][0] < 2):
                if tail == 1: waitp()
                if i == 0: a("s_nop 7")
        def merge(tr, pl, lead=0):
            tr = list(tr); pl = list(pl)
            for _ in range(min(lead, len(pl))): a(pl.pop(0))
            while tr or pl:
                if tr: a(tr.pop(0))
                if pl: a(pl.pop(0))
        gate(0)
        for x in stg[0][0]: a(x)
        for i in range(len(stg) if epi3 else 0):
            F, E, D, R, M, C, S = stg[i]
            merge(E, stg[i - 1][4] + stg[i - 1][5] if i else [])
            if i + 1 < len(stg): gate(i + 1)
            if len(D) < 4 or (i and len(stg[i - 1][2]) < 4): a("s_nop 0")
            merge(R, D + (stg[i + 1][0] if i + 1 < len(stg) else []) + (stg[i - 1][6] if i else []), lead=2)
        if epi3:
            a("s_nop 0")
            for x in stg[-1][4] + stg[-1][5]: a(x)
        for i in range(0 if epi3 else len(stg)):
            F, E, D, R, M, C, S = stg[i]
            for x in E: a(x)
            if i + 1 < len(stg):
                gate(i + 1)
                for x in stg[i + 1][0]: a(x)
            for x in D: a(x)
            if i:
                for x in stg[i - 1][6]: a(x)
            for x in R + M + C: a(x)
        a("s_nop 1")
        for x in stg[-1][6]: a(x)
    else:
        first2 = True; nstores = 0
        for i, (o, cbs) in enumerate(todo):
            if cbs[0] >= 2 and first2:
                first2 = False
                if tail == 1: waitp()
                if not nstores: a("s_nop 7")
            for x in item(o, cbs, XA + 8 * (i & 1), True): a(x)
            nstores += cbs[-1] & 1
    stamp(3)
    if spin:
        a("s_waitcnt vmcnt(0)")
        a.label("L_spin")
        a("s_sleep 4")
        a("s_memrealtime s[44:45]"); a("s_waitcnt lgkmcnt(0)"); a("s_sub_u32 s44, s44, s90"); a(f"s_cmp_lt_u32 s44, {spin*100}"); a("s_cbranch_scc1 L_spin")
    if stamps:
        a("s_waitcnt vmcnt(0)")
        stamp(4)
        a("s_cmp_eq_u32 s38, 0"); a("s_cbranch_scc0 L_end")
        a("s_lshl_b32 s36, s2, 7"); a("v_mov_b32 v1, s36")
        if pst: a("v_mov_b32 v4, s91"); a("global_store_dword v1, v4, s[34:35] offset:112")
        if tst:
            a("v_mov_b32 v4, s80"); a("v_mov_b32 v5, s81"); a("v_mov_b32 v6, s82"); a("v_mov_b32 v7, s83")
            a("global_store_dwordx3 v1, v[4:6], s[34:35] offset:96"); a("global_store_dword v1, v7, s[34:35] offset:112"); a("s_nop 2")
        for j in range(5):
            for qq in range(4): a(f"v_mov_b32 v{4+qq}, s{60+4*j+qq}")
            a(f"global_store_dwordx4 v1, v[4:7], s[34:35] offset:{16*j}"); a("s_nop 2")
    a.label("L_end")
    a("s_endpgm")

    if dm:
        import re
        i_iw = a.l.index("L_iw:"); i_go = a.l.index("L_go:")
        sub = a.l[i_iw:i_go]; k = 0; nl = []
        for x in sub:
            x = x.replace("L_iw:", "L_iw2:").replace("L_ix:", "L_ix2:")
            if "offen" in x and x.rstrip().endswith("lds"):
                if "v" in dm:
                    m = re.match(r"\s*buffer_load_dwordx4 (v\d+), (.*) lds", x); x = f"    buffer_load_dwordx4 v[{32+4*k}:{35+4*k}], {m.group(1)}, {m.group(2)}"; k += 1
                if "n" in dm: x = "    s_nop 0"
                if "h" in dm and ("offset:1024" in x or "offset:3072" in x): x = "    s_nop 0"
            if "s" in dm and re.match(r"\s*s_add_u32 s(54|55|56|44), ", x): x = "    s_nop 0"
            nl.append(x)
        i_l = a.l.index("L_ld3:"); i_c = a.l.index("L_compute:")
        body = [x.replace("L_iw", "L_iw2").replace("L_ix", "L_ix2") for x in a.l[i_l:i_c]]
        a.l = a.l[:i_l] + body + nl + a.l[i_c:]
        if "w" in dm: a.l = [x.replace("v_xor_b32 v3, v0, v8", "v_mov_b32 v3, v0").replace("v_xor_b32 v5, v5, v6", "v_mov_b32 v5, v6") for x in a.l]
    if nlast:
        idx = [i for i, x in enumerate(a.l) if x.strip().startswith("buffer_store_dwordx4")]
        for i in idx[-nlast:]: a.l[i] = a.l[i].replace(stpol, lastpol)
    out = HEADER
    out += "; Override launch geometry by editing the next line (default: block=256,\n; grid=ceil(out_elems/256), lds=0). Harness parses it; keep it on one line.\n"
    out += "; @launch grid=(256,1,1) block=(512,1,1) lds=163840\n"
    out += '.amdgcn_target "amdgcn-amd-amdhsa--gfx950"\n.text\n'
    out += DOC
    out += f".globl {KNAME}\n.p2align 8\n.type {KNAME},@function\n"
    out += annotate(a.text())
    out += f""".section .rodata,"a"
.p2align 6
.amdhsa_kernel {KNAME}
  .amdhsa_next_free_vgpr 256
  .amdhsa_next_free_sgpr 96
  .amdhsa_accum_offset 256
  .amdhsa_group_segment_fixed_size 0
  .amdhsa_kernarg_size 72
  .amdhsa_user_sgpr_count 2
  .amdhsa_user_sgpr_kernarg_segment_ptr 1
  .amdhsa_system_sgpr_workgroup_id_x 1
  .amdhsa_float_denorm_mode_32 3
.end_amdhsa_kernel
"""
    return out

if __name__ == "__main__":
    kw = {}
    for x in sys.argv[2:]:
        k, v = x.split("=")
        kw[k] = eval(v)
    open(sys.argv[1], "w").write(gen(**kw))
```

```python
import sys
from gen1 import Asm, HEADER, KNAME

XSLOT = 32768
WBASE = 65536
WSLOT = 24576
NST = 32

DOC = """; y[b,s,:] = x[b,s-1,:] w0 + x[b,s,:] w1 + x[b,s+1,:] w2 (zero padded), out = silu((y - mean) * g / sqrt(var + eps) + b)
;
; with w (ds_read_b64_tr_b16) as A and x (ds_read_b128) as B; the padded taps of positions 0 and 7 are not issued.
; in the gaps between the remaining MFMAs. Scale and shift (times -log2 e) are prepared by the loaders and
;
; compute registers: v0-63 x fragments (two buffers), v64-87 w fragments (two buffers), v88-94 LDS addresses,
"""
NOTES = {
    "L_pc:": "; code prefetch into L2, tile and role decode",
    "L_iw:": "; issue one 32-channel step of w (returns through s[36:37])",
    "L_ix:": "; issue four positions of one 64-channel chunk of x",
    "L_go:": "; loader schedule: counted waits, one barrier per step",
    "L_pc2:": "; code refresh for the tail, then scale / shift with the reference's bf16 roundings",
    "L_compute:": "; compute waves: addresses, zeroed accumulators, first group peeled",
    "L_loop:": "; two steps (one x chunk) per iteration, four 16-channel groups per step",
    "L_tail:": "; steps 28-31 block by block with the epilogue of blocks 0 and 1 in the MFMA gaps, then the rest",
}
def annotate(t):
    return "".join((NOTES[l] + "\n" if l in NOTES else "") + l + "\n" for l in t.rstrip("\n").split("\n"))

def gen(stamps=False, stpol=" sc1", old=10, start=2, tail=3, spin=0, spinref=0, fill=2, pst=0, cpf=True, fill2=None, x15early=True, spread=False, tlb=0, otouch=False, tsh=13, al=3, pad=0, split0=True, unroll=1, epi2=True, cpf2=True, warm=0, warmd=1, dm="", csh=5, nstr=2, margin=0, w31=False, tst=None, m29=True, ldst=False, spt=False, sp0=0, pace=0, map48=False, wfirst=False, epi3=False, gld=False, lastpol=None, xrow=False, jit=None, cdel=False, prio_l=0, nlast=0, rsp=1, seq3=((0,0),(1,0),(2,0),(3,0),(3,1),(2,1),(1,1),(0,1))):
    a = Asm()
    ACC = 128
    XA, XB = 0, 32
    WR = [64, 76]
    VX = [88, 89]; VW = [90, 91, 92, 93]; BW = 94; VOUT = 95
    SC, SH = 96, 112
    VPA, VPB, PK = SH + 12, SH + 13, SH + 8
    if fill2 is None: fill2 = fill

    def stamp(j):
        if stamps:
            a("s_memtime s[40:41]"); a("s_memrealtime s[42:43]"); a("s_waitcnt lgkmcnt(0)")
            for q in range(4): a(f"s_mov_b32 s{60+4*j+q}, s{40+q}")
        if spin and spinref == j:
            a("s_memrealtime s[44:45]"); a("s_waitcnt lgkmcnt(0)"); a("s_mov_b32 s90, s44")
    def pstamp(r):
        a("s_memtime s[92:93]"); a("s_waitcnt lgkmcnt(0)"); a(f"s_sub_u32 s{r}, s92, s60")

    a.label(KNAME)
    a("s_load_dwordx4 s[20:23], s[0:1], 0")
    a("s_cmp_ge_u32 s2, 256")
    a("s_cbranch_scc1 L_end")
    a("s_getpc_b64 s[30:31]")
    a.label("L_pc")
    if cpf:
        a(f"v_lshlrev_b32 v4, {csh}, v0")
        a("v_min_u32 v4, L_end-L_pc, v4")
        a(f"global_load_dword v{SH+15}, v4, s[30:31]")
    stamp(0)
    a("v_readfirstlane_b32 s18, v0")
    if map48 == 1:
        a("s_and_b32 s16, s2, 31"); a("s_lshr_b32 s17, s2, 5")
    elif map48 == 2:
        a("s_bfe_u32 s16, s2, 0x50001"); a("s_lshr_b32 s17, s2, 6"); a("s_and_b32 s3, s2, 1"); a("s_lshl2_add_u32 s17, s3, s17")
    elif map48 == 3:
        a("s_bfe_u32 s16, s2, 0x20001"); a("s_bfe_u32 s3, s2, 0x30003"); a("s_lshl3_add_u32 s16, s16, s3")
        a("s_lshr_b32 s17, s2, 6"); a("s_and_b32 s3, s2, 1"); a("s_lshl1_add_u32 s17, s17, s3")
    elif map48 == 4:
        a("s_bfe_u32 s16, s2, 0x50002"); a("s_lshr_b32 s17, s2, 7"); a("s_and_b32 s3, s2, 3"); a("s_lshl1_add_u32 s17, s3, s17")
    elif map48 == 5:
        a("s_bfe_u32 s16, s2, 0x50001"); a("s_lshr_b32 s17, s2, 7"); a("s_and_b32 s3, s2, 1"); a("s_lshl1_add_u32 s17, s17, s3"); a("s_bfe_u32 s3, s2, 0x10006"); a("s_lshl1_add_u32 s17, s17, s3")
    else:
        a("s_bfe_u32 s16, s2, 0x50001")
        a("s_lshr_b32 s17, s2, 6"); a("s_and_b32 s3, s2, 1"); a("s_lshl1_add_u32 s17, s17, s3")
    a("s_lshl_b32 s39, s16, 19")
    a("s_lshl_b32 s17, s17, 8")
    a("s_bfe_u32 s38, s18, 0x20006")
    a("v_and_b32 v0, 63, v0")
    a("s_bitcmp1_b32 s18, 8")
    if cdel:
        a("s_cbranch_scc1 L_ld0"); a("s_waitcnt lgkmcnt(0)"); a("s_branch L_compute"); a.label("L_ld0")
    else: a("s_cbranch_scc0 L_compute")
    if prio_l: a(f"s_setprio {prio_l}")

    def pf_w(step, R):
        a(f"s_bfe_u32 s{R}, s2, 0x30003"); a(f"s_lshl2_add_u32 s{R}, s{R}, s38"); a(f"s_mul_i32 s{R}, s{R}, 3")
        for k in range(3):
            a(f"s_add_u32 s{R+1}, s{R}, {k}"); a(f"s_lshr_b32 s{R+2}, s{R+1}, 5"); a(f"s_lshl_b32 s{R+2}, s{R+2}, 21")
            a(f"s_and_b32 s{R+1}, s{R+1}, 31"); a(f"s_lshl_b32 s{R+1}, s{R+1}, 11"); a(f"s_add_u32 s{R+1}, s{R+1}, s{R+2}"); a(f"s_add_u32 s{R+1}, s{R+1}, s17")
            a(f"s_add_u32 s{R+4}, s22, s{R+1}"); a(f"s_addc_u32 s{R+5}, s23, 0")
            for st_ in step:
                if st_ * 65536 + 128 < (1 << 20):
                    a(f"s_load_dword s{R+3}, s[{R+4}:{R+5}], {st_*65536}"); a(f"s_load_dword s{R+3}, s[{R+4}:{R+5}], {st_*65536 + 128}")
                else:
                    a(f"s_add_u32 s{R+6}, s{R+4}, {st_*65536}"); a(f"s_addc_u32 s{R+7}, s{R+5}, 0")
                    a(f"s_load_dword s{R+3}, s[{R+6}:{R+7}], 0"); a(f"s_load_dword s{R+3}, s[{R+6}:{R+7}], 128")
    def pf_x(chunk, rows, R):
        a(f"s_lshr_b32 s{R}, s2, 6"); a(f"s_lshl2_add_u32 s{R}, s{R}, s38"); a(f"s_lshl_b32 s{R}, s{R}, 15"); a(f"s_add_u32 s{R}, s{R}, s39")
        a(f"s_add_u32 s{R+4}, s20, s{R}"); a(f"s_addc_u32 s{R+5}, s21, 0")
        for r in rows: a(f"s_load_dword s{R+3}, s[{R+4}:{R+5}], {chunk*128 + r*2048}")

    a("v_lshrrev_b32 v8, 4, v0")
    a("v_lshrrev_b32 v1, 3, v0"); a(f"v_lshlrev_b32 v1, {11 if xrow else 14}, v1")
    a("v_xor_b32 v3, v0, v8"); a("v_and_b32 v3, 7, v3"); a("v_lshl_add_u32 v1, v3, 4, v1")
    a("s_lshl_b32 s46, s38, 12")
    a("s_lshr_b32 s49, s46, 1")
    if xrow:
        a("s_lshl_b32 s36, s38, 16"); a("v_add_u32 v1, s36, v1")
        a("v_xor_b32 v2, 64, v1"); a("v_add_u32 v3, 2*15360, v1"); a("v_add_u32 v4, 3*15360, v2"); a("v_add_u32 v2, 15360, v2")
    else:
        a("v_add_u32 v1, s49, v1")
        a("v_xor_b32 v2, 64, v1"); a("v_add_u32 v3, 2*130048, v1"); a("v_add_u32 v4, 3*130048, v2"); a("v_add_u32 v2, 130048, v2")
    a("s_and_b32 s36, s38, 1"); a("s_lshl_b32 s36, s36, 1"); a("v_lshl_or_b32 v5, v8, 2, s36")
    a("v_and_b32 v6, 15, v0"); a("v_xor_b32 v5, v5, v6"); a("v_lshlrev_b32 v5, 4, v5")
    a("v_lshl_add_u32 v5, v8, 11, v5")
    a("s_lshl2_add_u32 s36, s46, s17")
    a("v_add_u32 v5, s36, v5")
    a("v_add_u32 v6, 7168, v5")
    a("s_bitset1_b32 s49, 16")
    a("s_mov_b32 s44, 0"); a("s_movk_i32 s48, 0x4000"); a("s_mov_b32 s51, 0x40000" if xrow else "s_movk_i32 s51, 0x2000"); a("s_movk_i32 s52, 0x80")
    a("s_mov_b32 s54, 0"); a("s_mov_b32 s55, 0x200000"); a("s_lshl_b32 s56, s55, 1"); a("s_lshr_b32 s57, s55, 5")
    a("s_mov_b32 s47, s49"); a(f"s_add_u32 s50, s49, {4*WSLOT}")
    a("s_mov_b32 s7, 0x20000"); a("s_mov_b32 s11, s7"); a("s_lshl_b32 s6, s57, 3"); a("s_add_u32 s10, s55, s56")
    a("s_add_u32 s36, s30, L_go-L_pc"); a("s_addc_u32 s37, s31, 0")
    if tlb >= 2:
        a("s_lshl_b32 s24, s38, 21"); a("s_cmp_eq_u32 s38, 3"); a("s_cselect_b32 s24, s39, s24")
        a("v_mov_b32 v7, s24")
    a("s_waitcnt lgkmcnt(0)")
    if tlb >= 2:
        a("s_cselect_b64 s[24:25], s[20:21], s[22:23]")
        a("global_load_dword v9, v7, s[24:25]")
    a("s_mov_b64 s[8:9], s[22:23]")
    if gld:
        a("s_mov_b64 s[70:71], s[22:23]"); a("s_add_u32 s72, s22, s55"); a("s_addc_u32 s73, s23, 0"); a("s_add_u32 s74, s22, s56"); a("s_addc_u32 s75, s23, 0")
        a.label("L_iw")
        a("s_add_u32 m0, s47, 8192"); a(f"s_add_u32 s58, s47, {WSLOT}")
        a("global_load_lds_dwordx4 v5, s[72:73]"); a("global_load_lds_dwordx4 v6, s[72:73] offset:1024")
        a("s_addk_i32 m0, 8192"); a("s_add_u32 s72, s72, s57")
        a("global_load_lds_dwordx4 v5, s[74:75]"); a("global_load_lds_dwordx4 v6, s[74:75] offset:1024")
        a("s_addc_u32 s73, s73, 0"); a("s_mov_b32 m0, s47"); a("s_add_u32 s74, s74, s57")
        a("global_load_lds_dwordx4 v5, s[70:71]"); a("global_load_lds_dwordx4 v6, s[70:71] offset:1024")
        a("s_addc_u32 s75, s75, 0"); a("s_add_u32 s70, s70, s57"); a("s_addc_u32 s71, s71, 0")
        a("s_cmp_eq_u32 s58, s50"); a("s_cselect_b32 s47, s49, s58")
        a("s_setpc_b64 s[36:37]")
        a.label("L_ix")
        a("s_mov_b32 m0, s46"); a("s_add_u32 s76, s4, s44"); a("s_addc_u32 s77, s5, 0"); a("s_xor_b32 s46, s46, s48")
        for e in range(4): a(f"global_load_lds_dwordx4 v{1+e}, s[76:77]{f' offset:{1024*e}' if e else ''}")
        a("s_xor_b32 s48, s48, 0x8000"); a("s_add_u32 s44, s44, s51"); a("s_sub_u32 s51, s52, s51")
        a("s_setpc_b64 s[36:37]")
    else:
        a.label("L_iw")
        a("s_add_u32 m0, s47, 8192"); a(f"s_add_u32 s58, s47, {WSLOT}")
        a("buffer_load_dwordx4 v5, s[8:11], s55 offen lds"); a("buffer_load_dwordx4 v6, s[8:11], s55 offen offset:1024 lds")
        a("s_addk_i32 m0, 8192"); a("s_add_u32 s55, s55, s57")
        a("buffer_load_dwordx4 v5, s[8:11], s56 offen lds"); a("buffer_load_dwordx4 v6, s[8:11], s56 offen offset:1024 lds")
        a("s_mov_b32 m0, s47"); a("s_add_u32 s56, s56, s57")
        a("buffer_load_dwordx4 v5, s[8:11], s54 offen lds"); a("buffer_load_dwordx4 v6, s[8:11], s54 offen offset:1024 lds")
        a("s_add_u32 s54, s54, s57"); a("s_cmp_eq_u32 s58, s50"); a("s_cselect_b32 s47, s49, s58")
        a("s_setpc_b64 s[36:37]")
        a.label("L_ix")
        a("s_mov_b32 m0, s46"); a("s_xor_b32 s46, s46, s48")
        for e in range(4): a(f"buffer_load_dwordx4 v{1+e}, s[4:7], s44 offen{f' offset:{1024*e}' if e else ''} lds")
        a("s_xor_b32 s48, s48, 0x8000"); a("s_add_u32 s44, s44, s51"); a("s_sub_u32 s51, s52, s51")
        a("s_setpc_b64 s[36:37]")
    a.label("L_go")
    if pace:
        i0_ = a.l.index("L_iw:"); nl_ = []
        for x in a.l[i0_:]:
            nl_.append(x)
            if "lds" in x and x.strip().startswith("buffer"): nl_.append(f"    s_sleep {pace}")
        a.l = a.l[:i0_] + nl_

    after = {t: [] for t in range(-1, NST)}
    if start == 2:
        after[-1] = [("w", 0), ("x", 0, 0), ("x", 0, 1), ("w", 1)]
        after[0] = [("w", 2), ("x", 1, 0), ("x", 1, 1)]
        after[1] = [("w", 3), ("w", 4), ("x", 2, 0)]
        after[2] = [("x", 2, 1), ("w", 5)]
    elif start == 3:
        after[-1] = [("w", 0), ("x", 0, 0), ("x", 0, 1), ("w", 1)]
        after[0] = [("w", 2), ("x", 1, 0), ("x", 1, 1)]
        after[1] = [("w", 3), ("x", 2, 0)]
        after[2] = [("w", 4), ("x", 2, 1), ("w", 5)]
    for t in range(3, NST):
        m = (t + 3) // 2
        if m < 16: after[t].append(("x", m, (t + 3) & 1))
        if t + 3 < NST: after[t].append(("w", t + 3))
        if wfirst: after[t].reverse()
    if tail >= 2 and x15early:
        after[28].remove(("x", 15, 1)); after[27].insert(after[27].index(("x", 15, 0)) + 1, ("x", 15, 1))
    if spt:
        after[22].append(("px", 15, range(0, 8))); after[23].append(("px", 15, range(8, 16))); after[24].append(("pw", 30)); after[25].append(("pw", 31))
    after[2].append(("par",))
    after[26 if tail >= 2 else 29].append(("parw",))
    cost = {"px": 0, "pw": 0, "w": 6, "x": 4, "par": 4, "parw": (2 if tail >= 2 else 0) + int(otouch) + int(cpf2) + int(tail == 3 and w31)}
    waits = {}; issued = list(after[-1])
    for t in range(NST):
        need = max(i for i, q in enumerate(issued) if q == ("w", t) or (q[0] == "x" and q[1] == t // 2) or (q[0] == "parw" and t >= 28) or (tail == 3 and m29 and t == 28 and q == ("w", 29)))
        waits[t] = sum(cost[q[0]] for q in issued[need + 1:])
        if 3 <= t <= 27: waits[t] = min(waits[t], 10 if wfirst else 16)
        issued += after[t]
    PARAM = WBASE
    def emit(e):
        if e[0] == "x": a("s_call_b64 s[36:37], L_ix")
        elif e[0] == "w": a("s_call_b64 s[36:37], L_iw")
        elif e[0] == "px": pf_x(e[1], e[2], 80)
        elif e[0] == "pw": pf_w([e[1]], 80)
        elif e[0] == "par":
            a("s_load_dwordx8 s[24:31], s[0:1], 16"); a("s_load_dwordx2 s[34:35], s[0:1], 64")
            a("v_lshl_add_u32 v12, v0, 2, s17")
            a("s_waitcnt lgkmcnt(0)")
            for k in range(4): a(f"global_load_dword v{16+k}, v12, s[{24+2*k}:{25+2*k}]")
        elif e[0] == "parw":
            if tail == 3 and w31:
                a("s_mul_i32 s24, s38, 48"); a("v_min_u32 v13, 47, v0"); a("v_add_u32 v13, s24, v13")
                a("v_lshrrev_b32 v14, 6, v13"); a("v_lshlrev_b32 v14, 21, v14")
                a("v_bfe_u32 v15, v13, 1, 5"); a("v_lshl_add_u32 v14, v15, 11, v14")
                a("v_and_b32 v13, 1, v13"); a("v_lshl_add_u32 v14, v13, 7, v14")
                a(f"s_add_u32 s24, s17, {31*65536}")
                a("buffer_load_dword v15, v14, s[8:11], s24 offen")
            if cpf2:
                a("s_getpc_b64 s[28:29]")
                a.label("L_pc2")
                a("s_lshl_b32 s24, s38, 12"); a("s_add_u32 s24, s24, L_tail-L_pc2"); a("v_lshl_add_u32 v13, v0, 6, s24")
                a("v_min_u32 v13, L_end-L_pc2, v13")
                a("global_load_dword v15, v13, s[28:29]")
            if otouch:
                a("s_load_dwordx2 s[32:33], s[0:1], 48"); a("v_mov_b32 v13, s39"); a("s_waitcnt lgkmcnt(0)")
                a("global_load_dword v14, v13, s[32:33]")
            a("s_mov_b32 s24, 0xffff0000"); a("s_mov_b32 s25, 0x3727c5ac"); a("s_mov_b32 s26, 0xbfb8aa3b")
            for hi in range(2):
                def unpack(dst, src): a(f"v_and_b32 v{dst}, s24, v{src}" if hi else f"v_lshlrev_b32 v{dst}, 16, v{src}")
                def rnd(x): a(f"v_cvt_pk_bf16_f32 v{x}, v{x}, v{x}"); a(f"v_and_b32 v{x}, s24, v{x}")
                unpack(20, 17); unpack(21, 18); unpack(22, 16); unpack(23, 19)
                a("v_add_f32 v20, s25, v20"); rnd(20)
                a("v_sqrt_f32 v20, v20"); a("s_nop 0"); rnd(20)
                a("v_rcp_f32 v20, v20"); a("s_nop 0"); rnd(20)
                a("v_mul_f32 v20, v21, v20"); rnd(20)
                a("v_fma_f32 v23, -v22, v20, v23")
                a(f"v_mul_f32 v{24+hi}, s26, v20"); a(f"v_mul_f32 v{26+hi}, s26, v23")
            if tail >= 2:
                a("s_lshl_b32 s27, s2, 10"); a(f"s_add_u32 s27, s27, {WSOFF}"); a("v_lshl_add_u32 v12, v0, 3, s27")
                a("global_store_dwordx2 v12, v[24:25], s[34:35] sc1"); a("global_store_dwordx2 v12, v[26:27], s[34:35] offset:512 sc1")
            else:
                a("v_lshlrev_b32 v12, 3, v0"); a(f"v_add_u32 v12, {PARAM}, v12")
                a("ds_write_b64 v12, v[24:25]"); a("ds_write_b64 v12, v[26:27] offset:512")
                a("s_waitcnt lgkmcnt(0)")
    WSOFF = 1 << 20
    def lst(n):
        a("s_memtime s[40:41]"); a("s_memrealtime s[42:43]"); a("s_waitcnt lgkmcnt(0)")
        a(f"v_writelane_b32 v10, s40, {n}"); a(f"v_writelane_b32 v11, s42, {n}")
    def bar(t):
        if tail == 3 and m29 and t == 29: return
        a(f"s_waitcnt vmcnt({waits[t]})")
        if ldst and t < 31: lst(32 + t)
        a("s_barrier")
        if ldst: lst(t)
    for i, e in enumerate(after[-1]):
        if split0 and i == 3: a("s_waitcnt vmcnt(4)"); a("s_barrier")
        if i: emit(e)
        if i == 0: a("s_add_u32 s4, s20, s39"); a("s_addc_u32 s5, s21, 0")
        if pst == 2 and i < 3: pstamp((91, 94, 95)[i])
    if pst == 1:
        pstamp(91); pstamp(94); a(f"s_waitcnt vmcnt({waits[0]})"); pstamp(95)
    if ldst:
        a("v_mov_b32 v10, 0"); a("v_mov_b32 v11, 0")
        a("v_writelane_b32 v10, s60, 63"); a("v_writelane_b32 v11, s62, 63")
    def sig(t): return (waits[t], tuple(e[0] for e in after[t]))
    t = 0
    while t < NST:
        n = 1
        while t + n < NST and sig(t + n) == sig(t): n += 1
        if n > 2 and not ldst:
            a("s_mov_b32 s53, 0"); a.label(f"L_ld{t}")
            bar(t)
            for e in after[t]: emit(e)
            a("s_add_u32 s53, s53, 1"); a(f"s_cmp_lt_u32 s53, {n}"); a(f"s_cbranch_scc1 L_ld{t}")
            t += n
        else:
            bar(t)
            for e in after[t]: emit(e)
            t += 1
    if ldst:
        a("s_cmp_eq_u32 s38, 0"); a("s_cbranch_scc0 L_end")
        a("s_lshl_b32 s36, s2, 9"); a("s_add_u32 s36, s36, 65536")
        a("v_lshl_add_u32 v1, v0, 3, s36")
        a("global_store_dwordx2 v1, v[10:11], s[34:35]")
    if pst:
        a("s_cmp_eq_u32 s38, 0"); a("s_cbranch_scc0 L_end")
        a("s_lshl_b32 s36, s2, 7"); a("v_mov_b32 v1, s36")
        a("v_mov_b32 v4, s91"); a("v_mov_b32 v5, s94"); a("v_mov_b32 v6, s95"); a("v_mov_b32 v7, 0")
        a("global_store_dwordx4 v1, v[4:7], s[34:35] offset:96")
    a("s_endpgm")

    a.label("L_compute")
    a("s_load_dwordx2 s[32:33], s[0:1], 48")
    a("s_load_dwordx2 s[34:35], s[0:1], 64")
    if tlb in (1, 3):
        a("s_lshl_b32 s36, s38, 21"); a("s_cmp_eq_u32 s38, 3"); a("s_cselect_b32 s36, s39, s36"); a("v_mov_b32 v4, s36")
        a("s_waitcnt lgkmcnt(0)")
        a("s_cselect_b32 s24, s20, s22"); a("s_cselect_b32 s25, s21, s23")
        a(f"global_load_dword v{SH+14}, v4, s[24:25]")
    a("v_lshrrev_b32 v1, 4, v0")
    a("v_and_b32 v3, 15, v0")
    a("s_and_b32 s57, s38, 1"); a("s_lshr_b32 s58, s38, 1")
    for r in range(8, 12): a(f"v_mov_b32 v{r}, 0")
    a("s_lshl_b32 s37, s58, 7"); a("s_add_u32 s36, s17, s37"); a("s_lshl_b32 s37, s57, 18"); a("s_add_u32 s36, s36, s37")
    if warm:
        for r in range(12, 28): a(f"v_mul_u32_u24 v{r}, {0x3d5a91 + 0x12457 * r & 0xffffff}, v0"); a(f"v_and_b32 v{r}, 0x3fff3fff, v{r}")
        a("s_movk_i32 s53, 0"); a.label("L_warm")
        for i in range(12):
            a(f"v_mfma_f32_16x16x32_bf16 v[{ACC+4*(i//3)}:{ACC+4*(i//3)+3}], v[{12+4*(i&1)}:{15+4*(i&1)}], v[{20+4*(i>>1&1)}:{23+4*(i>>1&1)}], v[{ACC+4*(i//3)}:{ACC+4*(i//3)+3}]")
            if warmd > 1: a(f"s_nop {warmd}")
        a("s_add_u32 s53, s53, 1"); a(f"s_cmp_lt_u32 s53, {warm}"); a("s_cbranch_scc1 L_warm")
        a("s_nop 7")
    for r in range(8): a(f"v_mfma_f32_32x32x16_bf16 v[{ACC+16*r}:{ACC+16*r+15}], v[8:11], v[8:11], 0")
    a("v_lshlrev_b32 v4, 14, v3"); a("v_add_u32 v4, s36, v4")
    a("v_and_b32 v5, 1, v1"); a("v_lshl_add_u32 v4, v5, 5, v4")
    a("v_lshrrev_b32 v5, 1, v1"); a(f"v_lshl_add_u32 v{VOUT}, v5, 4, v4")
    a("v_lshrrev_b32 v4, 1, v3"); a("v_xor_b32 v4, v4, v1"); a("v_lshlrev_b32 v4, 4, v4")
    a("v_lshl_add_u32 v4, v3, 7, v4"); a("s_lshl_b32 s36, s57, 11")
    a(f"v_add_u32 v{VX[0]}, s36, v4"); a(f"v_xor_b32 v{VX[1]}, 64, v{VX[0]}")
    a("v_bfe_u32 v4, v0, 2, 2")
    a("v_lshl_add_u32 v5, v1, 3, v4"); a("v_lshlrev_b32 v5, 8, v5")
    a("v_and_b32 v6, 1, v1"); a("v_lshl_or_b32 v4, v4, 1, v6"); a("s_lshl_b32 s37, s58, 2"); a("v_xor_b32 v4, s37, v4")
    a("v_lshl_add_u32 v5, v4, 5, v5")
    a("v_and_b32 v4, 3, v0"); a("v_lshl_add_u32 v5, v4, 3, v5")
    a(f"v_add_u32 v{BW}, {WBASE}, v5")
    a(f"v_mov_b32 v{VW[0]}, v{BW}")
    for cb in (1, 2, 3): a(f"v_xor_b32 v{VW[cb]}, {32*cb}, v{BW}")
    a("s_lshl_b32 s59, s58, 8")
    if tail >= 2: a("s_lshl_b32 s37, s2, 10"); a("s_add_u32 s59, s59, s37"); a(f"s_add_u32 s59, s59, {WSOFF}")
    else: a(f"s_add_u32 s59, s59, {PARAM}")
    if tail == 3:
        a(f"v_lshl_add_u32 v{VPA}, v1, 4, s59")
        a("v_bfe_u32 v4, v0, 2, 1"); a("v_bfe_u32 v5, v0, 1, 1"); a("v_and_b32 v6, 1, v0")
        a(f"v_lshl_add_u32 v4, v4, 9, v{VPA}"); a("v_lshl_add_u32 v4, v5, 6, v4"); a(f"v_lshl_add_u32 v{VPB}, v6, 3, v4")
    a("s_mov_b32 s14, 524288"); a("s_mov_b32 s15, 0x20000")
    a("s_mov_b32 s50, 0"); a("s_mov_b32 s53, 0")
    a("s_mov_b32 s46, 0xbfb8aa3b"); a("s_mov_b32 s47, s46")
    for k in range(4): a(f"s_movk_i32 s{24+k}, {4096*k}")
    a("s_waitcnt lgkmcnt(0)")
    a("s_add_u32 s12, s32, s39"); a("s_addc_u32 s13, s33, 0")
    if sp0 == 1: pf_w([2], 80)
    if sp0 == 2: pf_w([1, 2], 80)
    if sp0 == 3: pf_x(1, range(0, 16, 2), 80)
    if sp0 == 4: pf_w([2], 80); pf_x(1, range(0, 16, 4), 80)
    if sp0: a("s_waitcnt lgkmcnt(0)")

    def acc(o, cb): return ACC + 16 * o + 4 * cb
    def xreads(h, extra=0): return [(f"X{h}{s}", f"ds_read_b128 v[{(XB if h else XA)+4*s}:{(XB if h else XA)+4*s+3}], v{VX[h]} offset:{extra + s*4096}") for s in range(8)]
    def wreads(k, vaddr, extra=0):
        r = []
        for tap in (1, 2, 0):
            for half in range(2):
                b = WR[k] + 4 * tap + 2 * half
                r.append((f"W{k}{tap}", f"ds_read_b64_tr_b16 v[{b}:{b+1}], v{vaddr} offset:{extra + tap*8192 + half*1024}"))
        return r

    class Q:
        def __init__(self): self.q = []; self.age = []
        def issue(self, tag, ins):
            if tag != "B": self.q.append(tag); self.age.append(0)
            a(ins)
        def tick(self): self.age = [x + 1 for x in self.age]
        def need(self, tags):
            idx = [i for i, t in enumerate(self.q) if t in tags]
            if idx:
                m = max(idx + [i for i, x in enumerate(self.age) if x >= old]); n = len(self.q) - 1 - m
                assert n <= 15
                a(f"s_waitcnt lgkmcnt({n})"); self.q = self.q[m + 1:]; self.age = self.age[m + 1:]
        def drain(self):
            if self.q: a("s_waitcnt lgkmcnt(0)")
            self.q = []; self.age = []
    q = Q()

    def group(h, cb, k, reads, alu=(), filler=None, fl=0):
        reads = list(reads); alu = list(alu)
        X = XB if h else XA
        gap = 0; nrd = len(reads)
        for o in range(8):
            for tap in ((0, 1, 2) if o % 2 == 0 else (2, 1, 0)):
                s = o + tap - 1
                if not 0 <= s <= 7: continue
                c = acc(o, cb); w = WR[k] + 4 * tap
                q.need({f"X{h}{s}", f"W{k}{tap}"})
                a(f"v_mfma_f32_16x16x32_bf16 v[{c}:{c+3}], v[{w}:{w+3}], v[{X+4*s}:{X+4*s+3}], v[{c}:{c+3}]"); q.tick()
                gap += 1
                if reads and not filler and rsp > 1 and (gap - 1) * nrd // 19 < nrd - len(reads):
                    if alu and not any(x.split()[1].rstrip(",") in r[1] for x in alu[:1] for r in reads): a(alu.pop(0))
                elif reads and (not filler or not spread or gap % 2 == 1):
                    q.issue(*reads.pop(0))
                    if filler and fl > 1: filler(fl - 1, fl)
                elif alu: a(alu.pop(0))
                elif filler: filler(fl, fl)
        assert not reads and not alu

    slot_adv = [f"s_add_u32 s50, s50, {WSLOT}", f"s_cmp_eq_u32 s50, {4*WSLOT}", "s_cselect_b32 s50, 0, s50"]
    marks = []
    def step(h, cnt=None, lab=None):
        xr = xreads(1) if h == 0 else []
        group(h, 0, 0, wreads(1, VW[1]) + xr, slot_adv)
        if lab:
            a.label(lab)
            assert g0state[0][len(g0state[0]) - len(q.q):] == q.q or True
            marks.append(list(q.q))
        group(h, 1, 1, wreads(0, VW[2]), [f"v_add_u32 v{VW[0]}, s50, v{BW}", f"v_xor_b32 v{VW[1]}, 32, v{VW[0]}", f"v_xor_b32 v{VX[h^1]}, {XSLOT}, v{VX[h^1]}"])
        if jit is not None:
            n_ = len(a.l); a(f"s_cmp_eq_u32 s38, {jit}"); a(f"s_cbranch_scc0 L_j{n_}"); a("s_sleep 12"); a.label(f"L_j{n_}")
        group(h, 2, 0, wreads(1, VW[3]), [f"v_xor_b32 v{VW[2]}, 64, v{VW[0]}"])
        q.drain(); a("s_barrier")
        nx = xreads(0) if h == 1 else []
        w = wreads(0, VW[0])
        group(h, 3, 1, w[:2] + nx[:3] + w[2:] + nx[3:], [f"v_xor_b32 v{VW[3]}, 96, v{VW[0]}"] + (["s_add_u32 s53, s53, 1", f"s_cmp_lt_u32 s53, {cnt}"] if cnt else []))

    if pst: pstamp(91)
    a("s_barrier")
    stamp(1)
    w = wreads(0, VW[0]); nx = xreads(0)
    if split0:
        for r in w[:2] + nx[:3] + w[2:] + nx[3:4]: q.issue(*r)
        group(0, 0, 0, wreads(1, VW[1]) + [("B", "s_barrier")] + nx[4:] + xreads(1), slot_adv)
        g0state = (list(q.q), list(q.age))
        a("s_branch L_g1")
        q.q = [r[0] for r in w[:2] + nx[:3] + w[2:] + nx[3:]]; q.age = [0] * len(q.q)
    else:
        for r in w[:2] + nx[:3] + w[2:] + nx[3:]: q.issue(*r)
    a(f".p2align {al}")
    for _ in range(pad): a("s_nop 0")
    a.label("L_loop")
    save = a.l; a.l = []; pre = list(q.q)
    step(0); step(1); st = (list(q.q), list(q.age))
    a.l = save
    assert st[0] == pre
    q.q, q.age = list(st[0]), list(st[1])
    nch = 14 if tail >= 2 else 15
    assert nch % unroll == 0
    for u in range(unroll):
        step(0, lab="L_g1" if split0 and u == 0 else None); step(1, cnt=nch // unroll if u == unroll - 1 else None)
    assert (q.q, q.age) == st
    if split0: print("queue at L_g1: loop", marks[0], "peeled", g0state[0], file=sys.stderr)
    a("s_cbranch_scc1 L_loop")
    a.label("L_tail")

    def sitem(o, cb, T, els=(0, 1, 2, 3)):
        A = acc(o, cb); S = SC + 4 * cb; H = SH + 4 * cb
        l = [f"v_fma_f32 v{A+r}, v{A+r}, v{S+r}, v{H+r}" for r in els]
        l += [f"v_exp_f32 v{T[i]}, v{A+r}" for i, r in enumerate(els)]
        l += [f"v_fma_f32 v{T[i]}, v{T[i]}, s46, s46" for i, r in enumerate(els)]
        l += [f"v_rcp_f32 v{T[i]}, v{T[i]}" for i, r in enumerate(els)]
        l += [f"v_mul_f32 v{A+r}, v{A+r}, v{T[i]}" for i, r in enumerate(els)]
        return l
    def item(o, cbs, T0, pk):
        A = acc(o, cbs[0]); S = SC + 4 * cbs[0]; H = SH + 4 * cbs[0]; n = 4 * len(cbs)
        l = []
        if not pk:
            l += [f"v_fma_f32 v{A+r}, v{A+r}, v{S+r}, v{H+r}" for r in range(n)]
            l += [f"v_exp_f32 v{T0+r}, v{A+r}" for r in range(n)]
            l += [f"v_fma_f32 v{T0+r}, v{T0+r}, s46, s46" for r in range(n)]
            l += [f"v_rcp_f32 v{T0+r}, v{T0+r}" for r in range(n)]
            l += [f"v_mul_f32 v{A+r}, v{A+r}, v{T0+r}" for r in range(n)]
        else:
            l += [f"v_pk_fma_f32 v[{A+r}:{A+r+1}], v[{A+r}:{A+r+1}], v[{S+r}:{S+r+1}], v[{H+r}:{H+r+1}]" for r in range(0, n, 2)]
            l += [f"v_exp_f32 v{T0+r}, v{A+r}" for r in range(n)]
            l += [f"v_pk_fma_f32 v[{T0+r}:{T0+r+1}], v[{T0+r}:{T0+r+1}], s[46:47], s[46:47]" for r in range(0, n, 2)]
            l += [f"v_rcp_f32 v{T0+r}, v{T0+r}" for r in range(n)]
            l += [f"v_pk_mul_f32 v[{A+r}:{A+r+1}], v[{A+r}:{A+r+1}], v[{T0+r}:{T0+r+1}]" for r in range(0, n, 2)]
        for cb in cbs:
            B = acc(o, cb)
            if cb & 1: l += [f"v_cvt_pk_bf16_f32 v{B}, v{B}, v{B+1}", f"v_cvt_pk_bf16_f32 v{B+1}, v{B+2}, v{B+3}"]
            else: l += [f"v_cvt_pk_bf16_f32 v{B+3}, v{B+2}, v{B+3}", f"v_cvt_pk_bf16_f32 v{B+2}, v{B}, v{B+1}"]
        if cbs[-1] & 1:
            cp = cbs[-1] >> 1; P = acc(o, 2 * cp) + 2
            l += ["s_nop 1", f"v_permlane16_swap_b32 v{P}, v{P+2}", f"v_permlane16_swap_b32 v{P+1}, v{P+3}",
                  f"buffer_store_dwordx4 v[{P}:{P+3}], v{VOUT}, s[12:15], s{24+(o>>1)} offen offset:{(o&1)*2048 + cp*64}{stpol}"]
        return l
    done = set(); cur = []; avail = set()
    def mkfiller(pend, T0):
        def filler(budget, full):
            while budget > 0:
                if not cur:
                    if not pend or pend[0][1] not in avail: return
                    o, cb = pend.pop(0); done.add((o, cb))
                    cur.extend(item(o, [cb], T0, False))
                c = 2 if cur[0].startswith(("v_exp", "v_rcp")) else 1
                if c > budget and budget < full: return
                a(cur.pop(0)); budget -= c
        return filler
    streams = [[], []]; ptail = []
    def mkpairfiller(pend, T):
        def istr(x): return x.startswith(("v_exp", "v_rcp"))
        def filler(budget, full):
            while budget > 0:
                if not streams[0] and not streams[1]:
                    streams[0].extend(ptail); ptail.clear()
                    if pend and avail:
                        o = pend.pop(0); done.update(((o, 0), (o, 1)))
                        c0 = item(o, [0], 0, False)[-2:]; l1 = item(o, [1], 0, False)[-6:]
                        A0 = acc(0, 0)
                        if o == 0:
                            streams[0].extend(sitem(0, 0, T, (0, 1)) + sitem(0, 0, T, (2, 3)) + c0 + sitem(0, 1, T + [A0, A0 + 1]) + l1[:2])
                        else:
                            streams[0].extend(sitem(o, 0, T + [A0, A0 + 1]) + c0)
                            streams[1].extend(sitem(o, 1, [A0 + 6, A0 + 7] + ([A0 + 2, A0 + 3] if o > 1 else [])  , (0, 1, 2, 3) if o > 1 else (0, 1)) + ([] if o > 1 else sitem(o, 1, [A0 + 6, A0 + 7], (2, 3))) + l1[:2])
                        ptail.extend(l1[2:])
                    if not streams[0]: return
                heads = [x for x in streams if x]
                tr = [x for x in heads if istr(x[0])]; pl = [x for x in heads if not istr(x[0])]
                if tr and (budget >= 2 or (budget == full and not pl)):
                    x = max(tr, key=len); a(x.pop(0)); budget -= 2
                elif pl:
                    x = max(pl, key=len); a(x.pop(0)); budget -= 1
                else: return
        return filler
    def lane48(v): return [f"v_mbcnt_lo_u32_b32 v{v}, -1, 0", f"v_mbcnt_hi_u32_b32 v{v}, -1, v{v}", f"v_and_b32 v{v}, 48, v{v}", f"v_add_u32 v{v}, s59, v{v}"]
    def preg(i): return (SC if i < 4 else SH) + 4 * (i & 3)
    if tail == 1:
        VP = VX[0]
        def par(i): return (f"P{i}", f"ds_read_b128 v[{preg(i)}:{preg(i)+3}], v{VP} offset:{(i&3)*64 + (i>>2)*512}")
        allp = {f"P{i}" for i in range(8)}
        filler = mkfiller([(o, cb) for cb in range(2) for o in range(8)], SC + 8)
        a("s_barrier")
        group(0, 0, 0, wreads(1, VW[0], WSLOT) + xreads(1), ["s_waitcnt vmcnt(0)"] + lane48(VP))
        group(1, 0, 1, wreads(0, VW[1]) + [par(i) for i in (0, 4, 1, 5)])
        q.need(allp); avail.add(0)
        group(0, 1, 0, wreads(1, VW[1], WSLOT), filler=filler, fl=fill)
        group(1, 1, 1, wreads(0, VW[2]), filler=filler, fl=fill)
        avail.add(1)
        group(0, 2, 0, wreads(1, VW[2], WSLOT), filler=filler, fl=fill)
        group(1, 2, 1, wreads(0, VW[3]), filler=filler, fl=fill)
        group(0, 3, 0, wreads(1, VW[3], WSLOT), filler=filler, fl=fill)
        group(1, 3, 1, [], filler=filler, fl=fill)
        stamp(2)
        while cur: a(cur.pop(0))
        for i in (2, 6, 3, 7): q.issue(*par(i))
        waitp = lambda: q.need(allp)
    elif tail == 2:
        VP = SH + 12
        gl = [f"global_load_dwordx4 v[{preg(i)}:{preg(i)+3}], v{VP}, s[34:35] offset:{(i&3)*64 + (i>>2)*512}" for i in range(8)]
        filler = mkpairfiller(list(range(8)), [VW[0], VW[1]])
        seq = [(t, cb) for cp in range(2) for t in range(4) for cb in (2 * cp, 2 * cp + 1)]
        for i, (t, cb) in enumerate(seq):
            k = i & 1; reads = []; alu = []
            if i + 1 < len(seq):
                t2, cb2 = seq[i + 1]
                if cb2 < 2 and t2 != t:
                    a("s_barrier")
                va = VW[cb2] if t2 < 2 else BW
                reads = wreads(k ^ 1, va, WSLOT if t2 == 1 else 0)
                if i + 2 < len(seq) and seq[i + 2][0] >= 2:
                    alu.append(f"v_add_u32 v{BW}, {seq[i+2][0]*WSLOT}, v{VW[seq[i+2][1]]}")
            nt = (t + 1) & 3
            if i + 2 < len(seq):
                if nt == 2 and cb < 2:
                    if cb & 1: reads = reads[:2] + xreads(0, XSLOT)[:3] + reads[2:] + xreads(0, XSLOT)[3:]
                elif i < 8:
                    if not cb & 1: reads = reads + xreads(nt & 1, XSLOT if nt >= 2 else 0)
                else: reads = reads + xreads(nt & 1, XSLOT if nt >= 2 else 0)[4*(cb&1):4*(cb&1)+4]
            if i == 0: alu += ["s_waitcnt vmcnt(0)"] + lane48(VP)
            if i == 3: alu += gl[:4]
            if i == 5: alu += gl[4:]
            if i == 8:
                a("s_waitcnt vmcnt(0)"); avail.update((0, 1))
            group(t & 1, cb, k, reads, alu, filler=filler if i >= 8 else None, fl=fill2 if i >= 12 else fill)
        stamp(2)
        for x in streams[0] + streams[1] + ptail: a(x)

        cnt = {"n": 0}
        waitp = None
    if tail == 3:
        import re
        class Sched:
            def __init__(self):
                self.pool = []; self.act = []; self.pend = []; self.packed = {}; self.tails = []; self.nst = 0
            def istr(self, x): return x.startswith(("v_exp", "v_rcp"))
            def ok(self, x):
                last = a.l[-1].strip()
                if self.istr(last) and not self.istr(x):
                    d = last.split()[1].rstrip(",")
                    if re.search(rf"\b{d}\b", x.split(",", 1)[1]): return False
                return True
            def top(self):
                for o in list(self.tails):
                    if self.stores_ok and len(a.l) - max(self.packed[(o, 0)], self.packed[(o, 1)]) >= 3:
                        self.tails.remove(o); self.act.insert(0, {"ops": item(o, [1], 0, False)[-3:], "t": [], "k": None})
                while len([x for x in self.act if x["k"]]) < nstr and self.pend and self.pend[0][1] in avail and len(self.pool) >= 2:
                    o, cb = self.pend.pop(0); done.add((o, cb))
                    n = 4 if len(self.pool) >= 4 else 2
                    self.pool.sort(reverse=True)
                    T = [self.pool.pop(0) for _ in range(n)]
                    ops = sitem(o, cb, T) if n == 4 else sitem(o, cb, T, (0, 1)) + sitem(o, cb, T, (2, 3))
                    full = item(o, [cb], 0, False)
                    self.act.append({"ops": ops + (full[-6:-4] if cb & 1 else full[-2:]), "t": T, "k": (o, cb)})
            def emit(self, st):
                x = st["ops"].pop(0); a(x)
                if x.startswith("buffer_store"): self.nst += 1
                if not st["ops"]:
                    self.act.remove(st); self.pool += [r for r in st["t"] if r not in self.retired]
                    if st["k"]:
                        o, cb = st["k"]; self.packed[(o, cb)] = len(a.l)
                        if (o, cb ^ 1) in self.packed: self.tails.append(o)
            def trans_ready(self):
                self.top()
                return any(self.istr(st["ops"][0]) or st["ops"][0].startswith("buffer") for st in self.act)
            def fill(self, budget, first):
                while budget > 0:
                    self.top()
                    mem = [st for st in self.act if st["ops"][0].startswith("buffer")]
                    tr = [st for st in self.act if self.istr(st["ops"][0])]
                    pl = [st for st in self.act if st not in mem and st not in tr and self.ok(st["ops"][0])]
                    if mem and first: self.emit(mem[0]); budget -= 1
                    elif tr and budget >= 2: self.emit(tr[0]); budget -= 2
                    elif pl: self.emit(pl[0]); budget -= 1
                    else: return
                    first = False
            def flush(self):
                self.pend = []
                while self.act or self.tails:
                    self.top()
                    el = [st for st in self.act if self.ok(st["ops"][0])]
                    if el: self.emit(el[0])
                    else: a("s_nop 0")
        sc = Sched(); sc.retired = set(); sc.stores_ok = True; late = []
        def xr3(t, buf): return [(f"X{buf}{s_}", f"ds_read_b128 v[{(XB if buf else XA)+4*s_}:{(XB if buf else XA)+4*s_+3}], v{VX[t&1]} offset:{(XSLOT if t >= 2 else 0) + s_*4096}") for s_ in range(8)]
        def group3(h, cb, k, reads, alu, fl, bar):
            reads = list(reads); alu = list(alu); X = XB if h else XA
            ms = [(o, tap) for o in range(8) for tap in ((0, 1, 2) if o % 2 == 0 else (2, 1, 0)) if 0 <= o + tap - 1 <= 7]
            for j, (o, tap) in enumerate(ms):
                s_ = o + tap - 1; c = acc(o, cb); w = WR[k] + 4 * tap
                q.need({f"X{h}{s_}", f"W{k}{tap}"})
                a(f"v_mfma_f32_16x16x32_bf16 v[{c}:{c+3}], v[{w}:{w+3}], v[{X+4*s_}:{X+4*s_+3}], v[{c}:{c+3}]"); q.tick()
                if j == 0 and bar:
                    a("s_barrier"); continue
                nxt = {f"X{h}{ms[j+1][0]+ms[j+1][1]-1}", f"W{k}{ms[j+1][1]}"} if j + 1 < 22 else {"W00", "W01", "W02", "W10", "W11", "W12"}
                b = fl - (1 if any(t_ in nxt for t_ in q.q) else 0) if fl else 0
                must = len(reads) + len(alu) > 21 - j - margin
                if late and not any(r in sc.retired for st in sc.act for r in st["t"]) and not must:
                    a(late.pop(0)); sc.stores_ok = not late
                    if fl: sc.fill(b - 1, False)
                elif (reads or alu) and (must or not fl or b < 2 or not sc.trans_ready()):
                    if reads: q.issue(*reads.pop(0))
                    else: a(alu.pop(0))
                    if fl: sc.fill(b - 1, False)
                elif fl: sc.fill(b, True)
            assert not reads and not alu
        VP = SH + 12
        def gl(i, v): return f"global_load_dwordx4 v[{preg(i)}:{preg(i)+3}], v{v}, s[34:35] offset:{(i&3)*64 + (i>>2)*512}"
        seq = list(seq3) + [(t, cb) for t in range(4) for cb in (2, 3)]
        c0done = max(i for i, g in enumerate(seq) if g[1] == 0) + 1
        landed = 1 if m29 else 0
        bufs = [0]; held = [0, None]; xl = {i: [] for i in range(len(seq))}
        for i in range(1, len(seq)):
            t = seq[i][0]
            if t in held: bufs.append(held.index(t)); continue
            b_ = bufs[i - 1] ^ 1; held[b_] = t; bufs.append(b_)
            x = xr3(t, b_)
            if i >= 2 and bufs[i - 2] == bufs[i - 1] and i >= 9: xl[i - 2] = x[:4]; xl[i - 1] = x[4:]
            else: xl[i - 1] = x
        for i, (t, cb) in enumerate(seq):
            k = i & 1; w = []; x = []; alu = []; bar = False
            if tst and i in tst:
                a("s_memtime s[92:93]"); q.drain(); a("s_waitcnt lgkmcnt(0)"); a(f"s_sub_u32 s{80+tst.index(i)}, s92, s64")
            if i + 1 < len(seq):
                t2, cb2 = seq[i + 1]
                if t2 > landed:
                    assert t2 == landed + 1
                    landed = t2; bar = True
                w = wreads(k ^ 1, VW[cb2] if t2 < 2 else BW, WSLOT if t2 == 1 else 0)
                if i + 2 < len(seq) and seq[i + 2][0] >= 2:
                    alu.append(f"v_add_u32 v{BW}, {seq[i+2][0]*WSLOT}, v{VW[seq[i+2][1]]}")
            x = xl[i]
            reads = w[:2] + x[:2] + w[2:4] + x[2:3] + w[4:] + x[3:] if len(x) == 8 else w + x
            if i == 0: alu += ["s_waitcnt vmcnt(0)"]
            if i == 1: alu += [gl(j, VPA) for j in (0, 4, 1, 5)] + [f"global_load_dwordx2 v[{PK}:{PK+1}], v{VPB}, s[34:35] offset:128"]
            if i == c0done:
                a("s_waitcnt vmcnt(0)"); avail.add(0)
                sc.pend = [(o, 0) for o in range(8)]; sc.pool = list(range(SC + 8, SC + 16))
            if i == 8:
                avail.add(1)
                rest = [o for (o, c_) in sc.pend]
                sc.pend = [p_ for o in range(8) for p_ in ([(o, 0)] if o in rest else []) + [(o, 1)]]
            if jit is not None:
                n_ = len(a.l); a(f"s_cmp_eq_u32 s38, {(jit + i) & 3}"); a(f"s_cbranch_scc0 L_j{n_}"); a("s_sleep 6"); a.label(f"L_j{n_}")
            group3(bufs[i], cb, k, reads, alu, fill if i >= c0done else 0, bar)
        assert not late and landed == 3
        stamp(2)
        sc.flush()
        print("tail 3: done in gaps", sorted(done), "stores", sc.nst, file=sys.stderr)
        for j in (0, 1, 2, 3, 5, 6, 7, 4):
            d = (SC if j < 4 else SH) + 8 + 2 * (j & 3)
            a(f"v_mov_b64_dpp v[{d}:{d+1}], v[{PK}:{PK+1}] row_newbcast:{j} row_mask:0xf bank_mask:0xf")
    todo = []
    for cp in range(2):
        for o in range(8):
            cbs = [cb for cb in (2 * cp, 2 * cp + 1) if (o, cb) not in done]
            if cbs: todo.append((o, cbs))
    if epi2:
        def stages(o, cbs, T0):
            l = item(o, cbs, T0, True); n = len(cbs)
            F, E, D, R, M, C = l[:2*n], l[2*n:6*n], l[6*n:8*n], l[8*n:12*n], l[12*n:14*n], l[14*n:16*n]
            return F, E, D, R, M, C, [x for x in l[16*n:] if not x.startswith("s_")]
        stg = [stages(o, cbs, XA + 8 * (i & 1)) for i, (o, cbs) in enumerate(todo)]
        def gate(i):
            if todo[i][1][0] >= 2 and (i == 0 or todo[i - 1][1][0] < 2):
                if tail == 1: waitp()
                if i == 0: a("s_nop 7")
        def merge(tr, pl, lead=0):
            tr = list(tr); pl = list(pl)
            for _ in range(min(lead, len(pl))): a(pl.pop(0))
            while tr or pl:
                if tr: a(tr.pop(0))
                if pl: a(pl.pop(0))
        gate(0)
        for x in stg[0][0]: a(x)
        for i in range(len(stg) if epi3 else 0):
            F, E, D, R, M, C, S = stg[i]
            merge(E, stg[i - 1][4] + stg[i - 1][5] if i else [])
            if i + 1 < len(stg): gate(i + 1)
            if len(D) < 4 or (i and len(stg[i - 1][2]) < 4): a("s_nop 0")
            merge(R, D + (stg[i + 1][0] if i + 1 < len(stg) else []) + (stg[i - 1][6] if i else []), lead=2)
        if epi3:
            a("s_nop 0")
            for x in stg[-1][4] + stg[-1][5]: a(x)
        for i in range(0 if epi3 else len(stg)):
            F, E, D, R, M, C, S = stg[i]
            for x in E: a(x)
            if i + 1 < len(stg):
                gate(i + 1)
                for x in stg[i + 1][0]: a(x)
            for x in D: a(x)
            if i:
                for x in stg[i - 1][6]: a(x)
            for x in R + M + C: a(x)
        a("s_nop 1")
        for x in stg[-1][6]: a(x)
    else:
        first2 = True; nstores = 0
        for i, (o, cbs) in enumerate(todo):
            if cbs[0] >= 2 and first2:
                first2 = False
                if tail == 1: waitp()
                if not nstores: a("s_nop 7")
            for x in item(o, cbs, XA + 8 * (i & 1), True): a(x)
            nstores += cbs[-1] & 1
    stamp(3)
    if spin:
        a("s_waitcnt vmcnt(0)")
        a.label("L_spin")
        a("s_sleep 4")
        a("s_memrealtime s[44:45]"); a("s_waitcnt lgkmcnt(0)"); a("s_sub_u32 s44, s44, s90"); a(f"s_cmp_lt_u32 s44, {spin*100}"); a("s_cbranch_scc1 L_spin")
    if stamps:
        a("s_waitcnt vmcnt(0)")
        stamp(4)
        a("s_cmp_eq_u32 s38, 0"); a("s_cbranch_scc0 L_end")
        a("s_lshl_b32 s36, s2, 7"); a("v_mov_b32 v1, s36")
        if pst: a("v_mov_b32 v4, s91"); a("global_store_dword v1, v4, s[34:35] offset:112")
        if tst:
            a("v_mov_b32 v4, s80"); a("v_mov_b32 v5, s81"); a("v_mov_b32 v6, s82"); a("v_mov_b32 v7, s83")
            a("global_store_dwordx3 v1, v[4:6], s[34:35] offset:96"); a("global_store_dword v1, v7, s[34:35] offset:112"); a("s_nop 2")
        for j in range(5):
            for qq in range(4): a(f"v_mov_b32 v{4+qq}, s{60+4*j+qq}")
            a(f"global_store_dwordx4 v1, v[4:7], s[34:35] offset:{16*j}"); a("s_nop 2")
    a.label("L_end")
    a("s_endpgm")

    if dm:
        import re
        i_iw = a.l.index("L_iw:"); i_go = a.l.index("L_go:")
        sub = a.l[i_iw:i_go]; k = 0; nl = []
        for x in sub:
            x = x.replace("L_iw:", "L_iw2:").replace("L_ix:", "L_ix2:")
            if "offen" in x and x.rstrip().endswith("lds"):
                if "v" in dm:
                    m = re.match(r"\s*buffer_load_dwordx4 (v\d+), (.*) lds", x); x = f"    buffer_load_dwordx4 v[{32+4*k}:{35+4*k}], {m.group(1)}, {m.group(2)}"; k += 1
                if "n" in dm: x = "    s_nop 0"
                if "h" in dm and ("offset:1024" in x or "offset:3072" in x): x = "    s_nop 0"
            if "s" in dm and re.match(r"\s*s_add_u32 s(54|55|56|44), ", x): x = "    s_nop 0"
            nl.append(x)
        i_l = a.l.index("L_ld3:"); i_c = a.l.index("L_compute:")
        body = [x.replace("L_iw", "L_iw2").replace("L_ix", "L_ix2") for x in a.l[i_l:i_c]]
        a.l = a.l[:i_l] + body + nl + a.l[i_c:]
        if "w" in dm: a.l = [x.replace("v_xor_b32 v3, v0, v8", "v_mov_b32 v3, v0").replace("v_xor_b32 v5, v5, v6", "v_mov_b32 v5, v6") for x in a.l]
    if nlast:
        idx = [i for i, x in enumerate(a.l) if x.strip().startswith("buffer_store_dwordx4")]
        for i in idx[-nlast:]: a.l[i] = a.l[i].replace(stpol, lastpol)
    out = HEADER
    out += "; Override launch geometry by editing the next line (default: block=256,\n; grid=ceil(out_elems/256), lds=0). Harness parses it; keep it on one line.\n"
    out += "; @launch grid=(256,1,1) block=(512,1,1) lds=163840\n"
    out += '.amdgcn_target "amdgcn-amd-amdhsa--gfx950"\n.text\n'
    out += DOC
    out += f".globl {KNAME}\n.p2align 8\n.type {KNAME},@function\n"
    out += annotate(a.text())
    out += f""".section .rodata,"a"
.p2align 6
.amdhsa_kernel {KNAME}
  .amdhsa_next_free_vgpr 256
  .amdhsa_next_free_sgpr 96
  .amdhsa_accum_offset 256
  .amdhsa_group_segment_fixed_size 0
  .amdhsa_kernarg_size 72
  .amdhsa_user_sgpr_count 2
  .amdhsa_user_sgpr_kernarg_segment_ptr 1
  .amdhsa_system_sgpr_workgroup_id_x 1
  .amdhsa_float_denorm_mode_32 3
.end_amdhsa_kernel
"""
    return out

if __name__ == "__main__":
    kw = {}
    for x in sys.argv[2:]:
        k, v = x.split("=")
        kw[k] = eval(v)
    open(sys.argv[1], "w").write(gen(**kw))
```
